```python
import torch

def _softmax(x, axis=-1):
    return torch.softmax(x, dim=axis)
def _gelu(x):
    return torch.nn.functional.gelu(x, approximate="tanh")
def _silu(x):
    return torch.nn.functional.silu(x)
def _sigmoid(x):
    return torch.sigmoid(x)
def _layernorm(x, axis=-1, eps=1e-5):
    m = x.mean(dim=axis, keepdim=True)
    v = x.var(dim=axis, keepdim=True, unbiased=False)
    return (x - m) / torch.sqrt(v + eps)
def _scatter_add(tgt, idx, src, axis=0):
    return tgt.clone().index_add_(axis, idx, src)
def _segment_sum(src, seg, n):
    out = torch.zeros((n,) + src.shape[1:], dtype=src.dtype)
    return out.index_add_(0, seg, src)
def _pad(x, pw):
    flat = tuple(v for pair in reversed(pw) for v in pair)
    return torch.nn.functional.pad(x, flat)

kernel_name = 'sequential_preLN__linear_attn_block__dense_activation_gelu__prompt'

def setup_inputs():

    _w = (lambda a: (lambda t: t.to(torch.bfloat16) if t.is_floating_point() else t)(torch.as_tensor(a)))
    def _A_setup():
        B, S, D = 1, 2048, 448
        return {
            "x": _w((lambda *s: torch.randn(*s, dtype=torch.bfloat16) * 0.05)(B, S, D)),
            "wqkv": _w((lambda *s: torch.randn(*s, dtype=torch.bfloat16) * 0.1)(D, 3 * D)),
            "wo": _w((lambda *s: torch.randn(*s, dtype=torch.bfloat16) * 0.05)(D, D)),
        }
    _A_in = _A_setup()

    def _B_setup():
        B, S, D, F = 1, 2048, 448, 1792
        return {
            "x": _w((lambda *s: torch.randn(*s, dtype=torch.bfloat16) * 0.05)(B, S, D)),
            "w1": _w((lambda *s: torch.randn(*s, dtype=torch.bfloat16) * 0.8)(D, F) * (D ** -0.5)),
            "b1": _w((lambda *s: torch.randn(*s, dtype=torch.bfloat16) * 12.8)(F) * 0.01),
            "w2": _w((lambda *s: torch.randn(*s, dtype=torch.bfloat16) * 0.4)(F, D) * (F ** -0.5)),
            "b2": _w((lambda *s: torch.randn(*s, dtype=torch.bfloat16) * 6.4)(D) * 0.01),
        }
    _B_in = _B_setup()

    return {
        "A_x": _A_in["x"],
        "A_wqkv": _A_in["wqkv"],
        "A_wo": _A_in["wo"],
        "B_x": _B_in["x"],
        "B_w1": _B_in["w1"],
        "B_b1": _B_in["b1"],
        "B_w2": _B_in["w2"],
        "B_b2": _B_in["b2"],
    }

def reference(A_x, A_wqkv, A_wo, B_x, B_w1, B_b1, B_w2, B_b2):
    def _A_ref(x, wqkv, wo):
        B, S, D = x.shape
        H = 16; Dh = D // H
        qkv = (lambda x, *d: x.permute(*d))((x @ wqkv).reshape(B, S, 3, H, Dh), 2, 0, 3, 1, 4)
        q, k, v = qkv[0], qkv[1], qkv[2]
        phi = lambda t: torch.where(t > 0, t + 1, torch.exp(t)) + 1e-6
        pq, pk = phi(q), phi(k)
        kv = torch.einsum("bhsd,bhse->bhde", pk, v)
        z = torch.einsum("bhsd->bhd", pk)
        num = torch.einsum("bhqd,bhde->bhqe", pq, kv)
        den = torch.einsum("bhqd,bhd->bhq", pq, z)[..., None] + 1e-6
        o = num / den
        return (lambda x, *d: x.permute(*d))(o, 0, 2, 1, 3).reshape(B, S, D) @ wo

    def _B_ref(x, w1, b1, w2, b2):
        h = torch.einsum("bsd,df->bsf", x, w1) + b1
        h = _gelu(h)
        return torch.einsum("bsf,fd->bsd", h, w2) + b2

    x = A_x
    h = x + _A_ref(_layernorm(x, axis=-1), A_wqkv, A_wo)
    h2 = h + _B_ref(_layernorm(h, axis=-1), B_w1, B_b1, B_w2, B_b2)
    return h2
```

```python
import re

TRANS = ("v_exp_f32", "v_log_f32", "v_rcp_f32", "v_rsq_f32", "v_sqrt_f32", "v_sin_f32", "v_cos_f32")


def regs(spec):
    spec = spec.strip()
    if spec.startswith("-"):
        spec = spec[1:]
    if spec.startswith("|") and spec.endswith("|"):
        spec = spec[1:-1]
    m = re.fullmatch(r"abs\((.*)\)", spec)
    if m:
        spec = m.group(1)
    m = re.fullmatch(r"([vas])\[(\d+):(\d+)\]", spec)
    if m:
        return {(m.group(1), i) for i in range(int(m.group(2)), int(m.group(3)) + 1)}
    m = re.fullmatch(r"([vas])(\d+)", spec)
    if m:
        return {(m.group(1), int(m.group(2)))}
    if spec in ("vcc", "vcc_lo", "vcc_hi"):
        return {("s", "vcc")}
    if spec == "m0":
        return {("s", "m0")}
    if spec in ("exec", "exec_lo", "exec_hi"):
        return {("s", "exec")}
    return set()


def R(kind, base, n=1):
    return f"{kind}{base}" if n == 1 else f"{kind}[{base}:{base + n - 1}]"


def v(b, n=1):
    return R("v", b, n)


def a(b, n=1):
    return R("a", b, n)


def s(b, n=1):
    return R("s", b, n)


class Ins:
    __slots__ = ("text", "kind", "dst", "src", "passes", "srcc", "op", "wide", "ws")

    def __init__(self, text, kind, dst=(), src=(), passes=0, srcc=(), op="", wide=False, ws=1):
        self.text = text
        self.kind = kind
        self.dst = set(dst)
        self.src = set(src)
        self.passes = passes
        self.srcc = set(srcc)
        self.op = op
        self.wide = wide
        self.ws = ws


MFMA_PASSES = {
    "v_mfma_f32_32x32x16_bf16": 8,
    "v_mfma_f32_16x16x32_bf16": 4,
    "v_mfma_f32_4x4x4_16b_bf16": 2,
}
T_AB = {2: 5, 4: 8, 8: 12, 16: 20}
T_COVL = {2: 4, 4: 6, 8: 10, 16: 18}
T_WAR = {2: 1, 4: 3, 8: 7, 16: 15}


class Asm:
    def __init__(self):
        self.out = []
        self.vm = []
        self.lg = []
        self.vm_seq = 0
        self.lg_seq = 0
        self.smem_pending = set()
        self.nlabel = 0

    def raw(self, text):
        self.out.append(Ins(text, "label", ws=0))

    def comment(self, t):
        self.out.append(Ins("; " + t, "label", ws=0))

    def _need_ws(self, ins):
        need = 0
        dist = 0
        allr = ins.src | ins.srcc
        for p in reversed(self.out):
            if dist >= 20:
                break
            req = 0
            if p.kind in ("valu", "trans", "perm", "rdlane"):
                vd = {r for r in p.dst if r[0] in "va"}
                sd = {r for r in p.dst if r[0] == "s"}
                if ins.kind == "mfma" and vd & allr:
                    req = max(req, 2)
                if p.kind == "trans" and ins.kind in ("valu", "perm", "rdlane") and vd & allr:
                    req = max(req, 1)
                if p.kind == "trans" and ins.kind in ("vmem_st", "ds_wr", "vmem_ld", "ds_rd", "dma") and vd & allr:
                    req = max(req, 1)
                if ins.kind == "perm" and vd & (allr | ins.dst):
                    req = max(req, 2)
                if ins.kind == "rdlane" and vd & allr:
                    req = max(req, 1)
                if sd & allr:
                    if ins.kind in ("valu", "trans", "perm", "mfma"):
                        req = max(req, 2)
                    if ins.kind == "rdlane":
                        req = max(req, 4)
                    if ins.kind in ("vmem_ld", "vmem_st", "dma"):
                        req = max(req, 5)
                    if ins.kind == "salu":
                        req = max(req, 1)
                if p.op.startswith("v_dot2") and vd & (allr | ins.dst) and ins.op != p.op:
                    req = max(req, 3)
            if p.kind == "mfma":
                P = p.passes
                if ins.kind == "mfma":
                    if p.dst & ins.src:
                        req = max(req, T_AB[P])
                    if p.dst & ins.srcc:
                        if p.dst == ins.srcc and P == ins.passes:
                            req = max(req, 2 if P == 2 else 0)
                        else:
                            req = max(req, T_COVL[P])
                    elif p.dst & ins.dst:
                        req = max(req, T_AB[P])
                else:
                    if p.dst & (allr | ins.dst):
                        req = max(req, T_AB[P])
                    if ins.kind in ("valu", "trans", "perm", "rdlane") and p.srcc & ins.dst:
                        req = max(req, T_WAR[P])
            if p.kind == "salu" and ("s", "m0") in p.dst and ins.kind == "dma":
                req = max(req, 1)
            if p.kind == "vmem_st" and p.wide and (p.src & ins.dst):
                req = max(req, 2)
            if p.kind == "salu" and ("s", "exec") in p.dst and ins.kind in ("perm", "rdlane", "mfma"):
                req = max(req, 1)
            need = max(need, req - dist)
            dist += p.ws
        return need

    def _auto_wait(self, ins):
        touched = ins.src | ins.srcc | ins.dst
        idx = -1
        for i, (_, d) in enumerate(self.vm):
            if d & touched:
                idx = i
        vmn = None
        if idx >= 0:
            vmn = len(self.vm) - 1 - idx
        idx = -1
        for i, (_, d) in enumerate(self.lg):
            if d & touched:
                idx = i
        lgn = None
        if idx >= 0:
            lgn = len(self.lg) - 1 - idx
        if self.smem_pending & touched:
            lgn = 0
        if vmn is not None or lgn is not None:
            self.waitcnt(vm=vmn, lg=lgn)

    def waitcnt(self, vm=None, lg=None):
        parts = []
        if vm is not None:
            vm = min(vm, 63)
            if vm < len(self.vm):
                parts.append(f"vmcnt({vm})")
                self.vm = self.vm[len(self.vm) - vm:] if vm > 0 else []
        if lg is not None:
            if self.smem_pending:
                lg = 0
            if lg < len(self.lg) or (lg == 0 and self.smem_pending):
                lg = min(lg, 15)
                parts.append(f"lgkmcnt({lg})")
                self.lg = self.lg[len(self.lg) - lg:] if lg > 0 else []
                if lg == 0:
                    self.smem_pending = set()
        if parts:
            self.out.append(Ins("s_waitcnt " + " ".join(parts), "misc"))

    def wait_vm_token(self, tok):
        for i, (t, _) in enumerate(self.vm):
            if t == tok:
                self.waitcnt(vm=len(self.vm) - 1 - i)
                return

    def wait_lg_token(self, tok):
        for i, (t, _) in enumerate(self.lg):
            if t == tok:
                self.waitcnt(lg=len(self.lg) - 1 - i)
                return

    def emit(self, ins):
        self._auto_wait(ins)
        n = self._need_ws(ins)
        while n > 0:
            k = min(n, 16)
            self.out.append(Ins(f"s_nop {k - 1}", "misc", ws=k))
            n -= k
        self.out.append(ins)

    def nop(self, k):
        self.out.append(Ins(f"s_nop {k - 1}", "misc", ws=k))

    def valu(self, op, dst, *srcs, mods="", extra_dst=(), extra_src=(), rmw=False):
        kind = "trans" if op in TRANS else "valu"
        d = regs(dst)
        sr = set()
        for x in srcs:
            sr |= regs(str(x))
        for x in extra_dst:
            d |= regs(x)
        for x in extra_src:
            sr |= regs(x)
        if rmw or op.startswith("v_fmac") or op.startswith("v_dot2c"):
            sr |= regs(dst)
        text = f"{op} {dst}, " + ", ".join(str(x) for x in srcs) + (" " + mods if mods else "")
        self.emit(Ins(text, kind, d, sr, op=op))

    def cmp(self, op, dst, a_, b_):
        self.emit(Ins(f"{op} {dst}, {a_}, {b_}", "valu", regs(dst), regs(str(a_)) | regs(str(b_)), op=op))

    def cndmask(self, dst, f, t, mask="vcc"):
        self.emit(Ins(f"v_cndmask_b32 {dst}, {f}, {t}, {mask}", "valu", regs(dst),
                      regs(str(f)) | regs(str(t)) | regs(mask), op="v_cndmask_b32"))

    def permlane32_swap(self, d, s_):
        r = regs(d) | regs(s_)
        self.emit(Ins(f"v_permlane32_swap_b32 {d}, {s_}", "perm", r, r, op="v_permlane32_swap_b32"))

    def readfirstlane(self, sd, vs):
        self.emit(Ins(f"v_readfirstlane_b32 {sd}, {vs}", "rdlane", regs(sd), regs(vs), op="v_readfirstlane_b32"))

    def salu(self, op, dst, *srcs):
        d = regs(dst)
        sr = set()
        for x in srcs:
            sr |= regs(str(x))
        text = f"{op} {dst}" + ("".join(", " + str(x) for x in srcs))
        self.emit(Ins(text, "salu", d, sr, op=op))

    def scmp(self, op, a_, b_):
        self.emit(Ins(f"{op} {a_}, {b_}", "salu", set(), regs(str(a_)) | regs(str(b_)), op=op))

    def sload(self, op, dst, base, off):
        self.emit(Ins(f"{op} {dst}, {base}, {off}", "smem", regs(dst), regs(base), op=op))
        self.smem_pending |= regs(dst)

    def mfma(self, op, d, a_, b_, c):
        self.emit(Ins(f"{op} {d}, {a_}, {b_}, {c}", "mfma", regs(d), regs(a_) | regs(b_),
                      passes=MFMA_PASSES[op], srcc=regs(str(c)), op=op))

    def mfma32(self, d, a_, b_, c):
        self.mfma("v_mfma_f32_32x32x16_bf16", d, a_, b_, c)

    def _vm_push(self, dst):
        self.vm_seq += 1
        self.vm.append((self.vm_seq, set(dst)))
        return self.vm_seq

    def _lg_push(self, dst):
        self.lg_seq += 1
        self.lg.append((self.lg_seq, set(dst)))
        return self.lg_seq

    def bload(self, op, dst, voff, srd, soff=0, offset=0, mods=""):
        t = f"{op} {dst}, {voff}, {srd}, {soff} offen" + (f" offset:{offset}" if offset else "") + (" " + mods if mods else "")
        self.emit(Ins(t, "vmem_ld", regs(dst), regs(voff) | regs(srd) | regs(str(soff)), op=op))
        return self._vm_push(regs(dst))

    def bstore(self, op, data, voff, srd, soff=0, offset=0, mods=""):
        t = f"{op} {data}, {voff}, {srd}, {soff} offen" + (f" offset:{offset}" if offset else "") + (" " + mods if mods else "")
        wide = op.endswith("x4") or op.endswith("x3")
        self.emit(Ins(t, "vmem_st", set(), regs(data) | regs(voff) | regs(srd) | regs(str(soff)), op=op, wide=wide))
        return self._vm_push(set())

    def dma(self, voff, srd, soff=0, offset=0, mods=""):
        t = f"buffer_load_dwordx4 {voff}, {srd}, {soff} offen" + (f" offset:{offset}" if offset else "") + (" " + mods if mods else "") + " lds"
        self.emit(Ins(t, "dma", set(), regs(voff) | regs(srd) | regs(str(soff)) | {("s", "m0")}, op="dma"))
        return self._vm_push(set())

    def gload(self, op, dst, vaddr, sbase, offset=0, mods=""):
        t = f"{op} {dst}, {vaddr}, {sbase}" + (f" offset:{offset}" if offset else "") + (" " + mods if mods else "")
        self.emit(Ins(t, "vmem_ld", regs(dst), regs(vaddr) | regs(sbase), op=op))
        return self._vm_push(regs(dst))

    def _lg_room(self):
        if len(self.lg) >= 15:
            self.waitcnt(lg=14)

    def dsr(self, op, dst, addr, offset=0, mods=None):
        self._lg_room()
        assert 0 <= offset < 65536, offset
        t = f"{op} {dst}, {addr}" + (mods if mods is not None else (f" offset:{offset}" if offset else ""))
        self.emit(Ins(t, "ds_rd", regs(dst), regs(addr), op=op))
        return self._lg_push(regs(dst))

    def dsw(self, op, addr, data, offset=0):
        self._lg_room()
        assert 0 <= offset < 65536, offset
        t = f"{op} {addr}, {data}" + (f" offset:{offset}" if offset else "")
        self.emit(Ins(t, "ds_wr", set(), regs(addr) | regs(data), op=op))
        return self._lg_push(set())

    def barrier(self):
        self.out.append(Ins("s_barrier", "misc"))

    def misc(self, text):
        self.out.append(Ins(text, "misc"))

    def label(self, name):
        self.out.append(Ins(f"{name}:", "label", ws=0))

    def newlabel(self, p="L"):
        self.nlabel += 1
        return f"{p}_{self.nlabel}"

    def text(self):
        lines = []
        for i in self.out:
            if i.kind == "label" and (i.text.endswith(":") or i.text.startswith(".") or i.text.startswith(";")):
                lines.append(i.text)
            else:
                lines.append("    " + i.text)
        return "\n".join(lines) + "\n"
```

```python
import math
import struct
import sys
import os

sys.path.insert(0, os.path.dirname(os.path.abspath(__file__)))
from asmlib import Asm, v, a, s

NAME = "sequential_preLN__linear_attn_block__dense_activation_gelu__prompt"

WS_KV = 0
WS_FLAGS = 0x10000
WS_HST = 0x20000
WS_WO = 0x60000
WS_W1 = 0xD0000
WS_W2 = WS_W1 + 56 * 29 * 1024
WS_PQ = WS_W2 + 14 * 112 * 1024
WS_H = WS_PQ + 64 * 32 * 1024
WS_H1 = WS_H + 64 * 28 * 1024
WS_END = WS_H1 + 64 * 112 * 1024
OOB = 0x7F000000

LOG2E = 1.4426950408889634
GC1 = -2.0 * math.sqrt(2.0 / math.pi) * LOG2E
GC2 = GC1 * 0.044715


def f32(x):
    return "0x%08x" % struct.unpack("<I", struct.pack("<f", x))[0]


def make_srd(A, d, b, size):
    A.salu("s_mov_b32", s(d), s(b))
    A.salu("s_and_b32", s(d + 1), s(b + 1), "0xffff")
    A.salu("s_mov_b32", s(d + 2), size if isinstance(size, str) else hex(size))
    A.salu("s_mov_b32", s(d + 3), "0x00020000")


def bcast_hi(A, dst, src, tmp):
    A.valu("v_mov_b32", tmp, src)
    A.valu("v_mov_b32", dst, src)
    A.permlane32_swap(tmp, dst)


def sum_halves(A, dst, src, tmp):
    A.valu("v_mov_b32", tmp, src)
    A.valu("v_mov_b32", dst, src)
    A.permlane32_swap(tmp, dst)
    A.valu("v_add_f32", dst, dst, tmp)


def code_prefetch(A, vtmp, vdst, sp, start_label, end_label, nloads, lane_v):
    here = A.newlabel("PC" + end_label)
    A.misc(f"s_getpc_b64 {s(sp, 2)}")
    A.raw(f"{here}:")
    if start_label is None:
        start_label = here
    else:
        A.misc(f"s_add_u32 {s(sp)}, {s(sp)}, {start_label}-{here}")
        A.misc(f"s_addc_u32 {s(sp + 1)}, {s(sp + 1)}, 0")
    for i in range(nloads):
        A.valu("v_lshlrev_b32", vtmp, 7, lane_v)
        if i:
            A.valu("v_add_u32", vtmp, hex(i * 8192), vtmp)
        A.misc(f"v_min_u32 {vtmp}, {end_label}-{start_label}-4, {vtmp}")
        A.gload("global_load_dword", vdst, vtmp, s(sp, 2))


def gen_k1(opt):
    A = Asm()
    KN = "k1_kernel"
    SLOT = 28672
    L_RP = 5 * SLOT
    L_SCR = L_RP + 16384
    L_CS1 = L_SCR
    L_CS2 = L_SCR + 512
    L_RS = L_SCR + 512 + 1536
    LDS_BYTES = L_RS + 512

    sX, sW, sWS, sDBG, sRP, sB1 = 28, 32, 36, 40, 44, 48
    sWv, sRb, sH, sKc, sT0, sT1, sT2, sT3 = 52, 53, 54, 55, 56, 57, 58, 59
    sXo, sWo = 60, 61
    sRS0, sRSTEP, sRDST, sRRS, sIsW1, sKh, sCt = 62, 63, 64, 65, 66, 67, 68
    sPC = 70
    sMx, sMw = 72, 73
    sC_eps6 = 74
    sC_l2e = 76
    sM0, sM1 = 78, 80
    sCnt = 82

    A.raw(f".globl {KN}")
    A.raw(".p2align 8")
    A.raw(f".type {KN},@function")
    A.raw(f"{KN}:")
    A.scmp("s_cmp_ge_u32", "s2", 256)
    A.misc("s_cbranch_scc1 K1_DONE")
    A.sload("s_load_dwordx16", s(4, 16), s(0, 2), 0)
    A.sload("s_load_dwordx4", s(20, 4), s(0, 2), 64)
    A.sload("s_load_dwordx2", s(24, 2), s(0, 2), 80)

    vL, vT0, vT1, vT2, vT3, vT4, vT5 = 1, 2, 3, 4, 5, 6, 7
    vXo = 8
    vWo = 12
    vRPo = 15
    vXa = 16
    vWa = 28
    vPad = 40
    vOnes2 = 44
    vSel = 48
    vRPa = 52
    vL16 = 53
    vB1 = 54
    vFlag = 55
    vZero = 56
    vXF = 64
    vWF = 72
    accQ, accK, accV = 96, 112, 128
    accSS = 144
    accCS = 152
    accRC = 164
    vRF = 168
    vR = 184
    vE = 200

    A.valu("v_and_b32", v(vL), 63, "v0")
    if opt.get("prefetch", True):
        code_prefetch(A, v(vT0), v(vT5), sPC, None, "K1_END", opt.get("k1_pf", 2), v(vL))
    A.valu("v_lshrrev_b32", v(vT0), 6, "v0")
    A.readfirstlane(s(sWv), v(vT0))
    A.salu("s_and_b32", s(sT0), "s2", 7)
    A.salu("s_lshr_b32", s(sT1), "s2", 3)
    A.salu("s_and_b32", s(sT2), s(sT0), 3)
    A.salu("s_lshl_b32", s(sT2), s(sT2), 2)
    A.salu("s_and_b32", s(sT3), s(sT1), 3)
    A.salu("s_add_u32", s(sRb), s(sT2), s(sT3))
    A.salu("s_lshr_b32", s(sT2), s(sT0), 2)
    A.salu("s_lshl_b32", s(sT2), s(sT2), 3)
    A.salu("s_lshr_b32", s(sH), s(sT1), 2)
    A.salu("s_lshl_b32", s(sT3), s(sT3), 1)
    A.salu("s_add_u32", s(sKc), s(sH), s(sT3))
    A.salu("s_add_u32", s(sH), s(sH), s(sT2))
    A.scmp("s_cmp_ge_u32", s(sKc), 7)
    A.salu("s_cselect_b32", s(sT0), 7, 0)
    A.salu("s_sub_u32", s(sKc), s(sKc), s(sT0))

    A.salu("s_lshl_b32", s(sT0), s(sRb), 7)
    A.salu("s_lshl_b32", s(sT1), s(sWv), 5)
    A.salu("s_add_u32", s(sT0), s(sT0), s(sT1))
    A.salu("s_movk_i32", s(sT1), 896)
    A.valu("v_lshrrev_b32", v(vT0), 3, v(vL))
    A.valu("v_and_b32", v(vT1), 7, v(vL))
    for b in range(4):
        A.valu("v_add_u32", v(vT2), 8 * b, v(vT0))
        A.valu("v_bfe_u32", v(vT3), v(vT2), 1, 3)
        A.valu("v_xor_b32", v(vT3), v(vT3), v(vT1))
        A.valu("v_add_u32", v(vT2), s(sT0), v(vT2))
        A.valu("v_mul_lo_u32", v(vT2), v(vT2), s(sT1))
        A.valu("v_lshl_add_u32", v(vT2), v(vT3), 4, v(vT2))
        if b:
            A.valu("v_subrev_u32", v(vXo + b), 1024 * b, v(vT2))
        else:
            A.valu("v_mov_b32", v(vXo + b), v(vT2))
    A.salu("s_mul_i32", s(sT0), s(sH), 56)
    A.salu("s_mul_i32", s(sT2), s(sWv), 16 * 2688)
    A.salu("s_add_u32", s(sT0), s(sT0), s(sT2))
    A.salu("s_movk_i32", s(sT2), 2688)
    for j in range(3):
        A.valu("v_add_u32", v(vT2), 64 * j, v(vL))
        A.valu("v_mul_u32_u24", v(vT3), 43691, v(vT2))
        A.valu("v_lshrrev_b32", v(vT3), 19, v(vT3))
        A.valu("v_mul_u32_u24", v(vT4), 12, v(vT3))
        A.valu("v_sub_u32", v(vT2), v(vT2), v(vT4))
        A.valu("v_mul_lo_u32", v(vT3), v(vT3), s(sT2))
        A.valu("v_lshrrev_b32", v(vT4), 2, v(vT2))
        A.valu("v_mul_lo_u32", v(vT4), v(vT4), s(sT1))
        A.valu("v_and_b32", v(vT2), 3, v(vT2))
        A.valu("v_lshl_add_u32", v(vT3), v(vT2), 4, v(vT3))
        A.valu("v_add3_u32", v(vT3), v(vT3), v(vT4), s(sT0))
        if j:
            A.valu("v_subrev_u32", v(vWo + j), 1024 * j, v(vT3))
        else:
            A.valu("v_mov_b32", v(vWo + j), v(vT3))

    make_srd(A, sX, 4, 2048 * 896)
    make_srd(A, sW, 6, 448 * 2688)
    make_srd(A, sWS, 24, WS_END)
    make_srd(A, sDBG, 22, 256)
    make_srd(A, sB1, 14, 1792 * 2)

    A.scmp("s_cmp_lt_u32", "s2", 112)
    A.salu("s_cselect_b32", s(sIsW1), 1, 0)
    A.salu("s_sub_u32", s(sT0), "s2", 224)
    A.salu("s_lshr_b32", s(sT1), s(sT0), 1)
    A.salu("s_and_b32", s(sKh), s(sT0), 1)
    A.salu("s_mul_i32", s(sT1), s(sT1), 28)
    A.salu("s_lshl_b32", s(sT2), s(sKh), 4)
    A.salu("s_add_u32", s(sT1), s(sT1), s(sT2))
    A.salu("s_mul_i32", s(sRS0), s(sT1), 896)
    A.salu("s_movk_i32", s(sRSTEP), 64)
    A.salu("s_mul_i32", s(sRDST), s(sT0), 14 * 1024)
    A.salu("s_add_u32", s(sRDST), s(sRDST), hex(WS_WO))
    A.salu("s_movk_i32", s(sRRS), 896)
    A.salu("s_mov_b32", s(sRP), "s8")
    A.salu("s_mov_b32", s(sRP + 1), "s9")
    A.salu("s_mov_b32", s(sRP + 2), hex(448 * 896))
    A.salu("s_mov_b32", s(sT3), s(sKh))
    A.salu("s_sub_u32", s(sT0), "s2", 112)
    A.salu("s_lshr_b32", s(sT1), s(sT0), 3)
    A.salu("s_and_b32", s(sT0), s(sT0), 7)
    A.salu("s_mul_i32", s(sT2), s(sT0), 224 * 896)
    A.salu("s_lshl_b32", s(sCt), s(sT1), 6)
    A.salu("s_add_u32", s(sT2), s(sT2), s(sCt))
    A.salu("s_mul_i32", s(sT1), s(sT1), 112)
    A.salu("s_mul_i32", s(sT0), s(sT0), 14)
    A.salu("s_add_u32", s(sT1), s(sT1), s(sT0))
    A.salu("s_lshl_b32", s(sT1), s(sT1), 10)
    A.salu("s_add_u32", s(sT1), s(sT1), hex(WS_W2))
    A.scmp("s_cmp_lt_u32", "s2", 224)
    A.salu("s_cselect_b32", s(sRS0), s(sT2), s(sRS0))
    A.salu("s_cselect_b32", s(sRSTEP), hex(16 * 896), s(sRSTEP))
    A.salu("s_cselect_b32", s(sRDST), s(sT1), s(sRDST))
    A.salu("s_cselect_b32", s(sRP), "s16", s(sRP))
    A.salu("s_cselect_b32", s(sRP + 1), "s17", s(sRP + 1))
    A.salu("s_cselect_b32", s(sRP + 2), hex(1792 * 896), s(sRP + 2))
    A.salu("s_cselect_b32", s(sT3), 0, s(sT3))
    A.salu("s_lshr_b32", s(sCt), "s2", 1)
    A.salu("s_and_b32", s(sKh), "s2", 1)
    A.salu("s_mul_i32", s(sT2), s(sKh), 224 * 3584)
    A.salu("s_lshl_b32", s(sT0), s(sCt), 6)
    A.salu("s_add_u32", s(sT2), s(sT2), s(sT0))
    A.salu("s_mul_i32", s(sT1), s(sCt), 29)
    A.salu("s_mul_i32", s(sT0), s(sKh), 14)
    A.salu("s_add_u32", s(sT1), s(sT1), s(sT0))
    A.salu("s_lshl_b32", s(sT1), s(sT1), 10)
    A.salu("s_add_u32", s(sT1), s(sT1), hex(WS_W1))
    A.scmp("s_cmp_lt_u32", "s2", 112)
    A.salu("s_cselect_b32", s(sRS0), s(sT2), s(sRS0))
    A.salu("s_cselect_b32", s(sRSTEP), hex(16 * 3584), s(sRSTEP))
    A.salu("s_cselect_b32", s(sRDST), s(sT1), s(sRDST))
    A.salu("s_cselect_b32", s(sRRS), hex(3584), s(sRRS))
    A.salu("s_cselect_b32", s(sRP), "s12", s(sRP))
    A.salu("s_cselect_b32", s(sRP + 1), "s13", s(sRP + 1))
    A.salu("s_and_b32", s(sRP + 1), s(sRP + 1), "0xffff")
    A.salu("s_mov_b32", s(sRP + 3), "0x00020000")
    A.valu("v_lshrrev_b32", v(vT0), 2, v(vL))
    A.valu("v_mul_lo_u32", v(vT1), v(vT0), s(sRRS))
    A.valu("v_and_b32", v(vT2), 3, v(vL))
    A.valu("v_lshl_add_u32", v(vT1), v(vT2), 4, v(vT1))
    A.salu("s_mul_i32", s(sT3), s(sT3), 52)
    A.salu("s_sub_u32", s(sT3), 64, s(sT3))
    A.cmp("v_cmp_gt_u32", "vcc", s(sT3), v(vT0))
    A.valu("v_mov_b32", v(vT2), hex(OOB))
    A.cndmask(v(vRPo), v(vT2), v(vT1))

    A.valu("v_lshlrev_b32", v(vL16), 4, v(vL))

    for i in range(4):
        A.valu("v_mov_b32", v(vZero + i), 0)
    A.salu("s_lshl_b32", s(sT0), s(sRb), 4)
    A.salu("s_add_u32", s(sT0), s(sT0), s(sH))
    A.salu("s_lshl_b32", s(sT1), s(sT0), 12)
    A.scmp("s_cmp_lt_u32", s(sT0), 18)
    A.salu("s_cselect_b32", s(sT1), s(sT1), hex(OOB))
    A.valu("v_lshlrev_b32", v(vT0), 4, "v0")
    A.bstore("buffer_store_dwordx4", v(vZero, 4), v(vT0), s(sWS, 4), s(sT1), mods="sc1")

    rp_tok = []
    A.salu("s_mul_i32", s(sT0), s(sWv), s(sRSTEP))
    A.salu("s_add_u32", s(sT0), s(sT0), s(sRS0))
    A.salu("s_lshl_b32", s(sT1), s(sRSTEP), 2)
    A.salu("s_lshl_b32", s(sT2), s(sWv), 12)
    A.salu("s_add_u32", s(sT2), s(sT2), hex(L_RP))
    for i in range(4):
        if i == 3:
            A.scmp("s_cmp_lt_u32", s(sWv), 2)
            A.salu("s_cselect_b32", s(sT0), s(sT0), hex(OOB))
        A.salu("s_add_u32", "m0", s(sT2), i * 1024)
        rp_tok.append(A.dma(v(vRPo), s(sRP, 4), s(sT0)))
        if i < 3:
            A.salu("s_add_u32", s(sT0), s(sT0), s(sT1))
    A.valu("v_and_b32", v(vT0), 31, v(vL))
    A.valu("v_lshlrev_b32", v(vT0), 1, v(vT0))
    A.salu("s_lshl_b32", s(sT0), s(sCt), 6)
    A.bload("buffer_load_ushort", v(vB1), v(vT0), s(sB1, 4), s(sT0))

    A.salu("s_lshl_b32", s(sMx), s(sWv), 12)
    A.salu("s_mul_i32", s(sMw), s(sWv), 3072)
    A.salu("s_add_u32", s(sMw), s(sMw), 16384)
    chunk_tok = {}

    def issue_chunk(it):
        slot = (it % 5) * SLOT
        A.salu("s_lshl_b32", s(sXo), s(sKc), 7)
        A.salu("s_mul_i32", s(sWo), s(sKc), 64 * 2688)
        A.salu("s_add_u32", "m0", s(sMx), hex(slot))
        for b in range(4):
            A.dma(v(vXo + b), s(sX, 4), s(sXo), offset=1024 * b)
        A.salu("s_add_u32", "m0", s(sMw), hex(slot))
        for j in range(3):
            t = A.dma(v(vWo + j), s(sW, 4), s(sWo), offset=1024 * j)
        chunk_tok[it] = t
        A.salu("s_add_u32", s(sKc), s(sKc), 1)
        A.scmp("s_cmp_eq_u32", s(sKc), 7)
        A.salu("s_cselect_b32", s(sKc), 0, s(sKc))

    for it in range(5):
        issue_chunk(it)

    if opt.get("prefetch", True):
        code_prefetch(A, v(vT0), v(vT5), sPC, "k2_kernel", "K2_END", opt.get("k2_pf", 3), v(vL))

    A.valu("v_and_b32", v(vT0), 31, v(vL))
    A.valu("v_lshrrev_b32", v(vT1), 5, v(vL))
    A.valu("v_lshrrev_b32", v(vT2), 3, v(vT0))
    A.valu("v_lshlrev_b32", v(vT2), 10, v(vT2))
    A.valu("v_and_b32", v(vT3), 7, v(vT0))
    A.valu("v_lshl_add_u32", v(vT2), v(vT3), 7, v(vT2))
    A.valu("v_add_u32", v(vT2), s(sMx), v(vT2))
    A.valu("v_bfe_u32", v(vT3), v(vT0), 1, 3)
    A.valu("v_xor_b32", v(vT3), v(vT3), v(vT1))
    for p in range(4):
        A.salu("s_add_u32", s(sT0), s(sWv), p)
        A.salu("s_and_b32", s(sT0), s(sT0), 3)
        A.salu("s_lshl_b32", s(sT1), s(sT0), 1)
        A.valu("v_xor_b32", v(vT4), s(sT1), v(vT3))
        A.valu("v_lshl_add_u32", v(vXa + p), v(vT4), 4, v(vT2))
        A.valu("v_add_u32", v(vXa + 4 + p), hex(2 * SLOT), v(vXa + p))
        A.valu("v_add_u32", v(vXa + 8 + p), hex(4 * SLOT), v(vXa + p))
    A.valu("v_bfe_u32", v(vT2), v(vL), 2, 2)
    A.valu("v_lshl_add_u32", v(vT2), v(vT1), 3, v(vT2))
    A.valu("v_mul_u32_u24", v(vT2), 192, v(vT2))
    A.valu("v_bfe_u32", v(vT3), v(vL), 4, 1)
    A.valu("v_lshl_add_u32", v(vT2), v(vT3), 5, v(vT2))
    A.valu("v_and_b32", v(vT4), 3, v(vL))
    A.valu("v_lshl_add_u32", v(vT2), v(vT4), 3, v(vT2))
    for p in range(4):
        A.salu("s_add_u32", s(sT0), s(sWv), p)
        A.salu("s_and_b32", s(sT0), s(sT0), 3)
        A.salu("s_mul_i32", s(sT0), s(sT0), 3072)
        A.salu("s_add_u32", s(sT0), s(sT0), 16384)
        A.valu("v_add_u32", v(vWa + p), s(sT0), v(vT2))
        A.valu("v_add_u32", v(vWa + 4 + p), hex(2 * SLOT), v(vWa + p))
        A.valu("v_add_u32", v(vWa + 8 + p), hex(4 * SLOT), v(vWa + p))
    A.valu("v_bfe_u32", v(vT2), v(vL), 2, 2)
    A.valu("v_lshl_add_u32", v(vT2), v(vT1), 2, v(vT2))
    A.valu("v_lshlrev_b32", v(vT2), 6, v(vT2))
    A.valu("v_lshl_add_u32", v(vT2), v(vT3), 5, v(vT2))
    A.valu("v_lshl_add_u32", v(vT2), v(vT4), 3, v(vT2))
    A.salu("s_add_u32", s(sT0), s(sMx), hex(L_RP))
    A.valu("v_add_u32", v(vRPa), s(sT0), v(vT2))
    A.valu("v_and_b32", v(vT2), 15, v(vL))
    A.valu("v_mul_u32_u24", v(vT2), 192, v(vT2))
    A.salu("s_add_u32", s(sT0), s(sMw), 56)
    A.valu("v_add_u32", v(vPad), s(sT0), v(vT2))
    A.valu("v_add_u32", v(vPad + 1), hex(2 * SLOT), v(vPad))
    A.valu("v_add_u32", v(vPad + 2), hex(4 * SLOT), v(vPad))
    A.valu("v_mov_b32", v(vOnes2), "0x3f803f80")
    A.valu("v_mov_b32", v(vOnes2 + 1), "0x3f803f80")
    A.valu("v_and_b32", v(vT2), 1, v(vL))
    A.cmp("v_cmp_eq_u32", "vcc", v(vT2), v(vT3))
    for i in range(4):
        A.cndmask(v(vSel + i), 0, v(vOnes2))
    A.salu("s_mov_b32", s(sC_eps6), f32(1e-6))
    A.salu("s_mov_b32", s(sC_eps6 + 1), f32(1e-6))
    A.salu("s_mov_b32", s(sC_l2e), f32(LOG2E))
    A.salu("s_mov_b32", s(sC_l2e + 1), f32(LOG2E))

    A.wait_vm_token(rp_tok[3])
    for i in range(4):
        A.dsr("ds_read_b64_tr_b16", v(vRF + 4 * i, 2), v(vRPa), offset=i * 1024)
        A.dsr("ds_read_b64_tr_b16", v(vRF + 4 * i + 2, 2), v(vRPa), offset=i * 1024 + 512)
    A.salu("s_lshl_b32", s(sT0), s(sWv), 10)
    A.salu("s_add_u32", s(sT0), s(sT0), s(sRDST))
    for i in range(4):
        if i == 3:
            A.scmp("s_cmp_lt_u32", s(sWv), 2)
            A.salu("s_cselect_b32", s(sT0), s(sT0), hex(OOB))
        A.bstore("buffer_store_dwordx4", v(vRF + 4 * i, 4), v(vL16), s(sWS, 4), s(sT0))
        A.mfma("v_mfma_f32_16x16x32_bf16", v(accRC, 4), v(vSel, 4), v(vRF + 4 * i, 4), 0 if i == 0 else v(accRC, 4))
        if i < 3:
            A.salu("s_add_u32", s(sT0), s(sT0), 4096)
    A.cmp("v_cmp_eq_u32", "vcc", 1, v(vT3))
    A.cndmask(v(vT2), v(accRC), v(accRC + 1))
    A.valu("v_and_b32", v(vT0), 31, v(vL))
    A.valu("v_lshlrev_b32", v(vT4), 4, v(vT0))
    A.salu("s_lshl_b32", s(sT0), s(sWv), 2)
    A.salu("s_add_u32", s(sT0), s(sT0), hex(L_CS1))
    A.valu("v_add_u32", v(vE), s(sT0), v(vT4))
    A.dsw("ds_write_b32", v(vE), v(vT2))
    A.valu("v_add_u32", v(vE + 1), hex(L_CS1), v(vT4))

    def kstep_reads(it, p, buf):
        st = (it % 5) // 2
        off = ((it % 5) % 2) * SLOT
        A.dsr("ds_read_b128", v(vXF + 4 * buf, 4), v(vXa + 4 * st + p), offset=off)
        for seg in range(3):
            A.dsr("ds_read_b64_tr_b16", v(vWF + 12 * buf + 4 * seg, 2), v(vWa + 4 * st + p), offset=off + seg * 64)
            A.dsr("ds_read_b64_tr_b16", v(vWF + 12 * buf + 4 * seg + 2, 2), v(vWa + 4 * st + p), offset=off + seg * 64 + 768)

    def kstep_mfma(it, p, buf):
        first = (it == 0 and p == 0)
        xf = v(vXF + 4 * buf, 4)
        wq, wk, wv = (v(vWF + 12 * buf + 4 * sg, 4) for sg in range(3))
        A.mfma32(v(accQ, 16), wq, xf, 0 if first else v(accQ, 16))
        A.mfma("v_mfma_f32_4x4x4_16b_bf16", v(accSS, 4), v(vXF + 4 * buf, 2), v(vXF + 4 * buf, 2), 0 if first else v(accSS, 4))
        A.mfma32(v(accK, 16), xf, wk, 0 if first else v(accK, 16))
        A.mfma("v_mfma_f32_4x4x4_16b_bf16", v(accSS + 4, 4), v(vXF + 4 * buf + 2, 2), v(vXF + 4 * buf + 2, 2), 0 if first else v(accSS + 4, 4))
        A.mfma32(v(accV, 16), xf, wv, 0 if first else v(accV, 16))
        if p == 0:
            for sg, wf in enumerate((wq, wk, wv)):
                A.mfma("v_mfma_f32_16x16x32_bf16", v(accCS + 4 * sg, 4), v(vSel, 4), wf, 0 if it == 0 else v(accCS + 4 * sg, 4))

    for it in range(7):
        A.comment(f"chunk {it}")
        A.wait_vm_token(chunk_tok[it])
        st = (it % 5) // 2
        A.dsw("ds_write_b64", v(vPad + st), v(vOnes2, 2), offset=((it % 5) % 2) * SLOT)
        A.waitcnt(lg=0)
        A.barrier()
        if it == 0:
            A.salu("s_lshl_b32", s(sT0), s(sH), 2)
            A.scmp("s_cmp_eq_u32", s(sRb), 0)
            A.salu("s_cselect_b32", s(sT0), s(sT0), hex(OOB))
            A.scmp("s_cmp_eq_u32", s(sWv), 0)
            A.salu("s_cselect_b32", s(sT0), s(sT0), hex(OOB))
            A.valu("v_mov_b32", v(vT0), 1)
            A.valu("v_mov_b32", v(vT2), 0)
            A.bstore("buffer_store_dword", v(vT0), v(vT2), s(sDBG, 4), s(sT0), mods="sc1")
        if it in (1, 2):
            issue_chunk(it + 4)
        kstep_reads(it, 0, 0)
        if it == 0:
            A.dsr("ds_read_b128", v(vE + 4, 4), v(vE + 1))
            A.valu("v_add_f32", v(vE + 4), v(vE + 4), v(vE + 5))
            A.valu("v_add_f32", v(vE + 6), v(vE + 6), v(vE + 7))
            A.valu("v_add_f32", v(vE + 4), v(vE + 4), v(vE + 6))
            A.valu("v_cvt_pk_bf16_f32", v(vE + 5), v(vE + 4), v(vE + 4))
            A.valu("v_lshlrev_b32", v(vE + 5), 16, v(vE + 5))
            A.valu("v_sub_f32", v(vE + 5), v(vE + 4), v(vE + 5))
            A.valu("v_lshlrev_b32", v(vE + 6), 16, v(vB1))
            A.scmp("s_cmp_eq_u32", s(sKh), 0)
            A.salu("s_cselect_b32", s(sT0), -1, 0)
            A.valu("v_and_b32", v(vE + 6), s(sT0), v(vE + 6))
            A.valu("v_cvt_pk_bf16_f32", v(vE + 8), v(vE + 4), v(vE + 5))
            A.valu("v_cvt_pk_bf16_f32", v(vE + 9), v(vE + 4), v(vE + 6))
            A.valu("v_lshrrev_b32", v(vE + 10), 16, v(vE + 6))
            A.valu("v_mov_b32", v(vE + 11), 0)
            A.valu("v_lshrrev_b32", v(vE + 5), 5, v(vL))
            A.cmp("v_cmp_eq_u32", "vcc", s(sKh), v(vE + 5))
            A.valu("v_mov_b32", v(vE + 5), hex(OOB))
            A.cndmask(v(vE + 5), v(vE + 5), v(vL16))
            A.salu("s_mul_i32", s(sT0), s(sCt), 29 * 1024)
            A.salu("s_add_u32", s(sT0), s(sT0), hex(WS_W1 + 28 * 1024))
            A.scmp("s_cmp_eq_u32", s(sIsW1), 1)
            A.salu("s_cselect_b32", s(sT0), s(sT0), hex(OOB))
            A.scmp("s_cmp_eq_u32", s(sWv), 0)
            A.salu("s_cselect_b32", s(sT0), s(sT0), hex(OOB))
            A.bstore("buffer_store_dwordx4", v(vE + 8, 4), v(vE + 5), s(sWS, 4), s(sT0))
        if it == 6:
            A.valu("v_mov_b32", v(vT2), 0)
            A.salu("s_lshl_b32", s(sT3), s(sH), 2)
            A.bload("buffer_load_dword", v(vFlag), v(vT2), s(sDBG, 4), s(sT3), mods="sc1")
        for p in range(4):
            if p < 3:
                kstep_reads(it, p + 1, (p + 1) & 1)
            kstep_mfma(it, p, p & 1)

    vSum, vSS, vMean, vRstd = vE, vE + 1, vE + 2, vE + 3
    vTa, vTb, vTc = vE + 4, vE + 5, vE + 6
    vXE = vE + 8
    vWE = vE + 12
    vCS = vE + 24
    A.valu("v_bfe_u32", v(vT3), v(vL), 4, 1)
    A.cmp("v_cmp_eq_u32", "vcc", 1, v(vT3))
    A.valu("v_and_b32", v(vT0), 31, v(vL))
    A.valu("v_mul_u32_u24", v(vT4), 48, v(vT0))
    A.salu("s_lshl_b32", s(sT0), s(sWv), 2)
    A.salu("s_add_u32", s(sT0), s(sT0), hex(L_CS2))
    A.valu("v_add_u32", v(vT2), s(sT0), v(vT4))
    A.valu("v_add_u32", v(vT4), hex(L_CS2), v(vT4))
    for sg in range(3):
        A.cndmask(v(vTa + sg), v(accCS + 4 * sg), v(accCS + 4 * sg + 1))
        A.dsw("ds_write_b32", v(vT2), v(vTa + sg), offset=16 * sg)
    for i in range(4):
        A.valu("v_add_f32", v(accSS + i), v(accSS + i), v(accSS + 4 + i))
    A.valu("v_and_b32", v(vT1), 3, v(vL))
    A.cmp("v_cmp_eq_u32", "vcc", 1, v(vT1))
    A.cndmask(v(vTa), v(accSS), v(accSS + 1))
    A.cmp("v_cmp_eq_u32", "vcc", 2, v(vT1))
    A.cndmask(v(vTa), v(vTa), v(accSS + 2))
    A.cmp("v_cmp_eq_u32", "vcc", 3, v(vT1))
    A.cndmask(v(vTa), v(vTa), v(accSS + 3))
    A.waitcnt(lg=0)
    A.barrier()
    for sg in range(3):
        A.dsr("ds_read_b128", v(vCS + 4 * sg, 4), v(vT4), offset=16 * sg)
    sum_halves(A, v(vSS), v(vTa), v(vTb))
    bcast_hi(A, v(vSum), v(accQ + 12), v(vTb))
    A.valu("v_mul_f32", v(vMean), f32(1.0 / 448), v(vSum))
    A.valu("v_mul_f32", v(vSS), f32(1.0 / 448), v(vSS))
    A.valu("v_fma_f32", v(vSS), "-" + v(vMean), v(vMean), v(vSS))
    A.valu("v_max_f32", v(vSS), 0, v(vSS))
    A.valu("v_add_f32", v(vSS), f32(1e-5), v(vSS))
    A.valu("v_rsq_f32", v(vRstd), v(vSS))
    A.salu("s_lshl_b32", s(sT0), s(sWv), 7)
    A.salu("s_add_u32", s(sT0), s(sT0), hex(L_RS))
    A.valu("v_lshl_add_u32", v(vT2), v(vT0), 2, s(sT0))
    A.dsw("ds_write_b32", v(vT2), v(vRstd))
    A.valu("v_lshrrev_b32", v(vT1), 5, v(vL))
    A.valu("v_lshl_add_u32", v(vT2), v(vT1), 4, s(sT0))
    A.waitcnt(lg=0)
    for q in range(4):
        A.dsr("ds_read_b128", v(vR + 4 * q, 4), v(vT2), offset=32 * q)
    A.valu("v_sub_f32", v(vTa), 0, v(vMean))
    A.valu("v_cvt_pk_bf16_f32", v(vXE), v(vTa), v(vTa))
    A.valu("v_lshlrev_b32", v(vTb), 16, v(vXE))
    A.valu("v_sub_f32", v(vTb), v(vTa), v(vTb))
    A.valu("v_cvt_pk_bf16_f32", v(vXE + 1), v(vTb), 0)
    A.valu("v_mov_b32", v(vXE + 2), 0)
    A.valu("v_mov_b32", v(vXE + 3), 0)
    A.cmp("v_cmp_eq_u32", "vcc", 0, v(vT1))
    for sg in range(3):
        c = vCS + 4 * sg
        A.valu("v_add_f32", v(c), v(c), v(c + 1))
        A.valu("v_add_f32", v(c + 2), v(c + 2), v(c + 3))
        A.valu("v_add_f32", v(c), v(c), v(c + 2))
        A.cndmask(v(c), 0, v(c))
        A.valu("v_cvt_pk_bf16_f32", v(c + 1), v(c), 0)
        A.valu("v_lshlrev_b32", v(c + 2), 16, v(c + 1))
        A.valu("v_sub_f32", v(c + 2), v(c), v(c + 2))
        A.valu("v_cvt_pk_bf16_f32", v(vWE + 4 * sg), v(c), v(c + 2))
        A.valu("v_mov_b32", v(vWE + 4 * sg + 1), v(c + 1))
        A.valu("v_mov_b32", v(vWE + 4 * sg + 2), 0)
        A.valu("v_mov_b32", v(vWE + 4 * sg + 3), 0)
    A.mfma32(v(accK, 16), v(vXE, 4), v(vWE + 4, 4), v(accK, 16))
    A.mfma32(v(accV, 16), v(vXE, 4), v(vWE + 8, 4), v(accV, 16))
    A.mfma32(v(accQ, 16), v(vWE, 4), v(vXE, 4), v(accQ, 16))
    vMk, vOv = vT4, vT5
    A.cmp("v_cmp_gt_u32", "vcc", 28, v(vT0))
    A.cndmask(v(vMk), 0, -1)
    A.cmp("v_cmp_eq_u32", "vcc", 28, v(vT0))
    A.cndmask(v(vOv), 0, v(vOnes2))

    vP = vXF

    def phi_pack(acc, rs_pair, dstbase):
        for i in range(0, 16, 2):
            A.valu("v_pk_fma_f32", v(acc + i, 2), v(acc + i, 2), rs_pair(i)[0], s(sC_eps6, 2), mods=rs_pair(i)[1])
        for i in range(0, 16, 2):
            A.valu("v_pk_mul_f32", v(vP + i, 2), v(acc + i, 2), s(sC_l2e, 2))
        for i in range(16):
            A.valu("v_exp_f32", v(vP + i), v(vP + i), mods="clamp")
            A.valu("v_max_f32", v(acc + i), s(sC_eps6), v(acc + i))
        for i in range(0, 16, 2):
            A.valu("v_pk_add_f32", v(acc + i, 2), v(acc + i, 2), v(vP + i, 2))
        for i in range(0, 16, 2):
            A.valu("v_cvt_pk_bf16_f32", v(dstbase + i // 2), v(acc + i), v(acc + i + 1))

    vPK = vP + 16
    vVV = vP + 24
    phi_pack(accK, lambda i: (v(vR + i, 2), ""), vPK)
    for i in range(8):
        A.valu("v_and_b32", v(vPK + i), v(vMk), v(vPK + i))
    for i in range(0, 16, 2):
        A.valu("v_pk_mul_f32", v(accV + i, 2), v(accV + i, 2), v(vR + i, 2))
    for i in range(0, 16, 2):
        A.valu("v_cvt_pk_bf16_f32", v(vVV + i // 2), v(accV + i), v(accV + i + 1))
        A.valu("v_and_or_b32", v(vVV + i // 2), v(vVV + i // 2), v(vMk), v(vOv))
    accKV = accK
    A.mfma32(v(accKV, 16), v(vPK, 4), v(vVV, 4), 0)
    A.mfma32(v(accKV, 16), v(vPK + 4, 4), v(vVV + 4, 4), v(accKV, 16))
    vRq = vE + 36
    A.valu("v_mov_b32", v(vRq), v(vRstd))
    A.valu("v_mov_b32", v(vRq + 1), v(vRstd))
    A.valu("v_add_u32", v(vT2), s(sMx), v(vL16))
    for g in range(4):
        A.dsw("ds_write_b128", v(vT2), v(accKV + 4 * g, 4), offset=1024 * g)
    A.waitcnt(lg=0)
    A.barrier()
    A.salu("s_lshl_b32", s(sT0), s(sWv), 10)
    A.valu("v_lshl_add_u32", v(vT2), v(vL), 2, s(sT0))
    vKR = accV
    for src in range(4):
        for u2 in range(2):
            o = (src * 4096 + u2 * 512) // 256
            A.dsr("ds_read2st64_b32", v(vKR + 4 * src + 2 * u2, 2), v(vT2), mods=f" offset0:{o} offset1:{o + 1}")
    A.readfirstlane(s(sT1), v(vFlag))
    A.scmp("s_cmp_lg_u32", s(sT1), 0)
    A.misc("s_cbranch_scc1 K1_FLAG_OK")
    A.salu("s_mov_b32", s(sCnt), 0)
    A.valu("v_mov_b32", v(vT1), 0)
    A.label("K1_POLL")
    A.misc(f"buffer_load_dword {v(vFlag)}, {v(vT1)}, {s(sDBG, 4)}, {s(sT3)} offen sc1")
    A.misc("s_waitcnt vmcnt(0)")
    A.misc(f"v_readfirstlane_b32 {s(sT1)}, {v(vFlag)}")
    A.misc(f"s_add_u32 {s(sCnt)}, {s(sCnt)}, 1")
    A.misc(f"s_cmp_gt_u32 {s(sCnt)}, 0x40000")
    A.misc("s_cbranch_scc1 K1_FLAG_OK")
    A.misc(f"s_cmp_eq_u32 {s(sT1)}, 0")
    A.misc("s_cbranch_scc1 K1_POLL")
    A.label("K1_FLAG_OK")
    for u in range(4):
        A.valu("v_add_f32", v(vKR + u), v(vKR + u), v(vKR + 4 + u))
        A.valu("v_add_f32", v(vKR + 8 + u), v(vKR + 8 + u), v(vKR + 12 + u))
        A.valu("v_add_f32", v(vKR + u), v(vKR + u), v(vKR + 8 + u))
    A.salu("s_lshl_b32", s(sT1), s(sH), 12)
    A.salu("s_add_u32", s(sT1), s(sT1), hex(WS_KV))
    for u in range(4):
        A.bstore("buffer_atomic_add_f32", v(vKR + u), v(vT2), s(sWS, 4), s(sT1), offset=256 * u)
    vPQ = vP + 16
    phi_pack(accQ, lambda i: (v(vRq, 2), ""), vPQ)
    A.salu("s_lshl_b32", s(sT0), s(sRb), 2)
    A.salu("s_add_u32", s(sT0), s(sT0), s(sWv))
    A.salu("s_lshl_b32", s(sT0), s(sT0), 4)
    A.salu("s_add_u32", s(sT0), s(sT0), s(sH))
    A.salu("s_lshl_b32", s(sT0), s(sT0), 11)
    A.salu("s_add_u32", s(sT0), s(sT0), hex(WS_PQ))
    A.bstore("buffer_store_dwordx4", v(vPQ, 4), v(vL16), s(sWS, 4), s(sT0))
    A.bstore("buffer_store_dwordx4", v(vPQ + 4, 4), v(vL16), s(sWS, 4), s(sT0), offset=1024)
    A.label("K1_DONE")
    A.misc("s_endpgm")
    A.label("K1_END")
    return A.text(), LDS_BYTES


def gen_k2(opt):
    A = Asm()
    KN = "k2_kernel"
    L_W1 = 0
    L_RB = 114688
    LDS_BYTES = 163840
    sX, sWS, sOUT, sB2 = 28, 32, 36, 40
    sWv, sG, sJ, sRt2, sCt, sT0, sT1, sT2, sT3 = 44, 45, 46, 47, 48, 49, 50, 51, 52
    sWhi, sWlo = 53, 54
    sCnt = 55
    sPC = 56
    sRow = 58
    sCol = 59
    sW2b0, sW2b1 = 60, 61
    sFl = 62
    sM = 64
    sOne = 66

    A.raw(f".globl {KN}")
    A.raw(".p2align 8")
    A.raw(f".type {KN},@function")
    A.raw(f"{KN}:")
    A.scmp("s_cmp_ge_u32", "s2", 224)
    A.misc("s_cbranch_scc1 K2_DONE")
    A.sload("s_load_dwordx2", s(4, 2), s(0, 2), 0)
    A.sload("s_load_dwordx4", s(16, 4), s(0, 2), 56)
    A.sload("s_load_dwordx2", s(24, 2), s(0, 2), 80)

    vL, vL16, vT0, vT1, vT2, vT3, vT4, vT5 = 1, 2, 3, 4, 5, 6, 7, 8
    vHH, vR31 = 9, 10
    vRes = 12
    vB2 = 20
    vL16b = 28
    vRs2 = 29
    vKV = 32
    vPQ = 96
    acc = 160
    vTA = 224
    aWO = 0

    A.valu("v_and_b32", v(vL), 63, "v0")
    A.valu("v_lshrrev_b32", v(vT0), 6, "v0")
    A.readfirstlane(s(sWv), v(vT0))
    A.valu("v_lshlrev_b32", v(vL16), 4, v(vL))
    A.valu("v_lshrrev_b32", v(vHH), 5, v(vL))
    A.valu("v_and_b32", v(vR31), 31, v(vL))
    A.salu("s_and_b32", s(sT0), "s2", 7)
    A.salu("s_lshr_b32", s(sT1), "s2", 3)
    A.scmp("s_cmp_ge_u32", s(sT1), 14)
    A.salu("s_cselect_b32", s(sT2), 1, 0)
    A.salu("s_lshl_b32", s(sG), s(sT0), 1)
    A.salu("s_add_u32", s(sG), s(sG), s(sT2))
    A.salu("s_mul_i32", s(sT2), s(sT2), 14)
    A.salu("s_sub_u32", s(sJ), s(sT1), s(sT2))
    A.scmp("s_cmp_ge_u32", s(sJ), 7)
    A.salu("s_cselect_b32", s(sRt2), 1, 0)
    A.salu("s_mul_i32", s(sT2), s(sRt2), 7)
    A.salu("s_sub_u32", s(sCt), s(sJ), s(sT2))
    A.salu("s_lshr_b32", s(sWhi), s(sWv), 1)
    A.salu("s_and_b32", s(sWlo), s(sWv), 1)
    A.salu("s_lshl_b32", s(sRow), s(sG), 2)
    A.salu("s_lshl_b32", s(sT0), s(sRt2), 1)
    A.salu("s_add_u32", s(sRow), s(sRow), s(sT0))
    A.salu("s_add_u32", s(sRow), s(sRow), s(sWhi))
    A.salu("s_lshl_b32", s(sCol), s(sCt), 1)
    A.salu("s_add_u32", s(sCol), s(sCol), s(sWlo))
    make_srd(A, sWS, 24, WS_END)
    make_srd(A, sX, 4, 2048 * 896)
    make_srd(A, sOUT, 18, 2048 * 896)
    make_srd(A, sB2, 16, 896)
    A.salu("s_mov_b32", s(sOne), "1.0")
    A.salu("s_mov_b32", s(sOne + 1), "1.0")

    sKVb, sPQ0, sPQ1, sWO0, sWO1 = 68, 69, 70, 71, 72
    A.salu("s_lshl_b32", s(sKVb), s(sWv), 14)
    A.salu("s_add_u32", s(sKVb), s(sKVb), hex(WS_KV))
    for aa, sp in ((0, sPQ0), (1, sPQ1)):
        A.salu("s_xor_b32", s(sT0), s(sRow), aa)
        A.salu("s_lshl_b32", s(sT0), s(sT0), 15)
        A.salu("s_lshl_b32", s(sT1), s(sWv), 13)
        A.salu("s_add_u32", s(sT0), s(sT0), s(sT1))
        A.salu("s_add_u32", s(sp), s(sT0), hex(WS_PQ))
    for bb, sp in ((0, sWO0), (1, sWO1)):
        A.salu("s_xor_b32", s(sT0), s(sCol), bb)
        A.salu("s_mul_i32", s(sT1), s(sWv), 8 * 14)
        A.salu("s_add_u32", s(sT0), s(sT0), s(sT1))
        A.salu("s_lshl_b32", s(sT0), s(sT0), 10)
        A.salu("s_add_u32", s(sp), s(sT0), hex(WS_WO))
    for hd in range(4):
        for g in range(4):
            A.bload("buffer_load_dwordx4", v(vKV + 16 * hd + 4 * g, 4), v(vL16), s(sWS, 4), s(sKVb), offset=1024 * g)
        A.salu("s_add_u32", s(sKVb), s(sKVb), 4096)
        for aa, sp in ((0, sPQ0), (1, sPQ1)):
            for f in range(2):
                A.bload("buffer_load_dwordx4", v(vPQ + 16 * hd + 8 * aa + 4 * f, 4), v(vL16), s(sWS, 4), s(sp), offset=1024 * f)
            A.salu("s_add_u32", s(sp), s(sp), 2048)
        for f in range(2):
            for bb, sp in ((0, sWO0), (1, sWO1)):
                A.bload("buffer_load_dwordx4", a(aWO + 16 * hd + 8 * f + 4 * bb, 4), v(vL16), s(sWS, 4), s(sp))
                A.salu("s_add_u32", s(sp), s(sp), 14 * 1024)
    A.salu("s_lshl_b32", s(sT0), s(sRow), 5)
    A.valu("v_add_u32", v(vT0), s(sT0), v(vR31))
    A.salu("s_movk_i32", s(sT1), 896)
    A.valu("v_mul_lo_u32", v(vT0), v(vT0), s(sT1))
    A.valu("v_lshl_add_u32", v(vT5), v(vHH), 3, v(vT0))
    A.salu("s_lshl_b32", s(sT0), s(sCol), 6)
    for q in range(4):
        A.bload("buffer_load_dwordx2", v(vRes + 2 * q, 2), v(vT5), s(sX, 4), s(sT0), offset=16 * q)
    A.valu("v_lshlrev_b32", v(vT0), 3, v(vHH))
    for q in range(4):
        A.bload("buffer_load_dwordx2", v(vB2 + 2 * q, 2), v(vT0), s(sB2, 4), s(sT0), offset=16 * q)

    A.salu("s_lshl_b32", s(sT0), s(sJ), 2)
    A.salu("s_add_u32", s(sT0), s(sT0), s(sWv))
    A.salu("s_mul_i32", s(sT0), s(sT0), 29 * 1024)
    A.salu("s_add_u32", s(sT0), s(sT0), hex(WS_W1))
    A.salu("s_mul_i32", s(sT1), s(sWv), 28672)
    w1_tok = None
    for n in range(7):
        A.salu("s_add_u32", "m0", s(sT1), hex(L_W1 + n * 4096))
        for i in range(4):
            w1_tok = A.dma(v(vL16), s(sWS, 4), s(sT0), offset=1024 * i)
        A.salu("s_add_u32", s(sT0), s(sT0), 4096)
    aW1E = 224
    A.salu("s_mul_i32", s(sT0), s(sJ), 4 * 29 * 1024)
    A.salu("s_add_u32", s(sT0), s(sT0), hex(WS_W1 + 28 * 1024))
    for c4 in range(4):
        A.bload("buffer_load_dwordx4", a(aW1E + 4 * c4, 4), v(vL16), s(sWS, 4), s(sT0))
        A.salu("s_add_u32", s(sT0), s(sT0), 29 * 1024)
    for bb, sp in ((0, sW2b0), (1, sW2b1)):
        A.salu("s_xor_b32", s(sT0), s(sCol), bb)
        A.salu("s_mul_i32", s(sT0), s(sT0), 112)
        A.salu("s_mul_i32", s(sT1), s(sWv), 28)
        A.salu("s_add_u32", s(sT0), s(sT0), s(sT1))
        A.salu("s_lshl_b32", s(sT0), s(sT0), 10)
        A.salu("s_add_u32", s(sp), s(sT0), hex(WS_W2))

    def aW2(ks, bb):
        return 8 * ks + 4 * bb

    def load_w2(ks_list):
        for ks in ks_list:
            for bb, sp in ((0, sW2b0), (1, sW2b1)):
                A.salu("s_add_u32", s(sT0), s(sp), ks * 1024 - (ks % 4) * 1024)
                A.bload("buffer_load_dwordx4", a(aW2(ks, bb), 4), v(vL16), s(sWS, 4), s(sT0), offset=(ks % 4) * 1024)

    n_early = opt.get("w2_early", 0)
    early = list(range(8, 8 + n_early))
    late = [k for k in range(28) if k not in early]
    load_w2(early)

    units = [(hd, aa) for hd in range(4) for aa in range(2)]

    def b_cvt_kv(hd):
        base = vKV + 16 * hd
        for i in range(8):
            A.valu("v_cvt_pk_bf16_f32", v(base + i), v(base + 2 * i), v(base + 2 * i + 1))

    def b_stage1(u):
        hd, aa = units[u]
        if aa == 0:
            b_cvt_kv(hd)
        t = vTA + 16 * (u & 1)
        A.mfma32(v(t, 16), v(vKV + 16 * hd, 4), v(vPQ + 16 * hd + 8 * aa, 4), 0)
        A.mfma32(v(t, 16), v(vKV + 16 * hd + 4, 4), v(vPQ + 16 * hd + 8 * aa + 4, 4), v(t, 16))

    def b_norm(u):
        t = vTA + 16 * (u & 1)
        A.valu("v_add_f32", v(vT0), f32(1e-6), v(t + 12))
        A.valu("v_rcp_f32", v(vT0), v(vT0))
        bcast_hi(A, v(vT1), v(vT0), v(vT2))
        for i in range(16):
            A.valu("v_mul_f32", v(t + i), v(vT1), v(t + i))
        for i in range(8):
            A.valu("v_cvt_pk_bf16_f32", v(t + i), v(t + 2 * i), v(t + 2 * i + 1))

    def b_stage2(u):
        hd, aa = units[u]
        t = vTA + 16 * (u & 1)
        for f in range(2):
            for bb in range(2):
                blk = acc + 16 * (2 * aa + bb)
                first = (hd == 0 and f == 0)
                A.mfma32(v(blk, 16), a(aWO + 16 * hd + 8 * f + 4 * bb, 4), v(t + 4 * f, 4), 0 if first else v(blk, 16))

    b_stage1(0)
    for u in range(8):
        if u + 1 < 8:
            b_stage1(u + 1)
        b_norm(u)
        b_stage2(u)

    def reduce_tiles(rbuf):
        for r in range(1, 4):
            A.salu("s_xor_b32", s(sT0), s(sWv), r)
            A.salu("s_mul_i32", s(sT0), s(sT0), 3 * 4096)
            A.salu("s_add_u32", s(sT0), s(sT0), hex(L_RB + (r - 1) * 4096))
            A.valu("v_add_u32", v(vT0), s(sT0), v(vL16))
            for g in range(4):
                A.dsw("ds_write_b128", v(vT0), v(acc + 16 * r + 4 * g, 4), offset=1024 * g)
        A.salu("s_mul_i32", s(sT0), s(sWv), 3 * 4096)
        A.salu("s_add_u32", s(sT0), s(sT0), hex(L_RB))
        A.valu("v_add_u32", v(vT0), s(sT0), v(vL16))
        A.waitcnt(lg=0)
        A.barrier()
        for r in range(3):
            for g in range(4):
                A.dsr("ds_read_b128", v(rbuf + 16 * r + 4 * g, 4), v(vT0), offset=4096 * r + 1024 * g)
        for r in range(3):
            for i in range(0, 16, 2):
                A.valu("v_pk_add_f32", v(acc + i, 2), v(acc + i, 2), v(rbuf + 16 * r + i, 2))

    reduce_tiles(vKV)
    for i in range(8):
        A.valu("v_lshlrev_b32", v(vT0), 16, v(vRes + i))
        A.valu("v_and_b32", v(vT1), "0xffff0000", v(vRes + i))
        A.valu("v_add_f32", v(acc + 2 * i), v(acc + 2 * i), v(vT0))
        A.valu("v_add_f32", v(acc + 2 * i + 1), v(acc + 2 * i + 1), v(vT1))
        A.valu("v_cvt_pk_bf16_f32", v(vRes + i), v(acc + 2 * i), v(acc + 2 * i + 1))
    A.salu("s_mul_i32", s(sT0), s(sRow), 28)
    A.salu("s_lshl_b32", s(sT1), s(sCol), 1)
    A.salu("s_add_u32", s(sT0), s(sT0), s(sT1))
    A.salu("s_lshl_b32", s(sT0), s(sT0), 10)
    A.salu("s_add_u32", s(sT0), s(sT0), hex(WS_H))
    A.bstore("buffer_store_dwordx4", v(vRes, 4), v(vL16), s(sWS, 4), s(sT0), mods="sc1")
    A.bstore("buffer_store_dwordx4", v(vRes + 4, 4), v(vL16), s(sWS, 4), s(sT0), offset=1024, mods="sc1")
    vS1, vS2 = vTA, vTA + 1
    A.valu("v_mov_b32", v(vT2), "0x3f803f80")
    A.valu("v_dot2_f32_bf16", v(vT0), v(vRes), v(vT2), 0)
    A.valu("v_dot2_f32_bf16", v(vT1), v(vRes), v(vRes), 0)
    for i in range(1, 8):
        A.valu("v_dot2_f32_bf16", v(vT0), v(vRes + i), v(vT2), v(vT0))
        A.valu("v_dot2_f32_bf16", v(vT1), v(vRes + i), v(vRes + i), v(vT1))
    sum_halves(A, v(vS1), v(vT0), v(vT3))
    sum_halves(A, v(vS2), v(vT1), v(vT3))
    A.cmp("v_cmp_eq_u32", "vcc", 0, v(vHH))
    A.valu("v_lshlrev_b32", v(vT0), 3, v(vR31))
    A.valu("v_mov_b32", v(vT1), hex(OOB))
    A.cndmask(v(vT0), v(vT1), v(vT0))
    A.salu("s_mul_i32", s(sT0), s(sRow), 14)
    A.salu("s_add_u32", s(sT0), s(sT0), s(sCol))
    A.salu("s_lshl_b32", s(sT0), s(sT0), 8)
    A.salu("s_add_u32", s(sT0), s(sT0), hex(WS_HST))
    A.bstore("buffer_store_dwordx2", v(vS1, 2), v(vT0), s(sWS, 4), s(sT0), mods="sc1")

    def group_sync(idx, tag):
        A.waitcnt(vm=0, lg=0)
        A.barrier()
        A.salu("s_lshl_b32", s(sFl), s(sG), 8)
        A.salu("s_add_u32", s(sFl), s(sFl), hex(WS_FLAGS + idx * 4096))
        A.salu("s_lshl_b32", s(sT0), s(sJ), 2)
        A.salu("s_add_u32", s(sT0), s(sT0), s(sFl))
        A.scmp("s_cmp_eq_u32", s(sWv), 0)
        A.salu("s_cselect_b32", s(sT0), s(sT0), hex(OOB))
        A.valu("v_mov_b32", v(vT0), 1)
        A.valu("v_mov_b32", v(vT1), 0)
        A.bstore("buffer_store_dword", v(vT0), v(vT1), s(sWS, 4), s(sT0), mods="sc1")
        A.valu("v_min_u32", v(vT1), 13, v(vL))
        A.valu("v_lshlrev_b32", v(vT1), 2, v(vT1))
        A.salu("s_mov_b32", s(sCnt), 0)
        A.label(f"K2_POLL{tag}")
        A.misc(f"buffer_load_dword {v(vT2)}, {v(vT1)}, {s(sWS, 4)}, {s(sFl)} offen sc1")
        A.misc("s_waitcnt vmcnt(0)")
        A.misc(f"v_cmp_ne_u32 vcc, 1, {v(vT2)}")
        A.misc(f"s_add_u32 {s(sCnt)}, {s(sCnt)}, 1")
        A.misc(f"s_cmp_gt_u32 {s(sCnt)}, 0x40000")
        A.misc(f"s_cbranch_scc1 K2_POLLX{tag}")
        A.misc("s_nop 1")
        A.misc(f"s_cbranch_vccnz K2_POLL{tag}")
        A.label(f"K2_POLLX{tag}")
        A.vm = []

    group_sync(0, "A")

    vH = 32
    vWF = 144
    accC = 160
    vST = 224
    vHE = 240
    vC1, vC2 = 244, 245
    vG = 246
    sRowC = 73
    A.salu("s_lshl_b32", s(sRowC), s(sG), 2)
    A.salu("s_add_u32", s(sRowC), s(sRowC), s(sWv))
    A.salu("s_mul_i32", s(sT0), s(sRowC), 14 * 256)
    A.salu("s_add_u32", s(sT0), s(sT0), hex(WS_HST))
    A.valu("v_mul_u32_u24", v(vT0), 7 * 256, v(vHH))
    A.valu("v_lshl_add_u32", v(vT0), v(vR31), 3, v(vT0))
    A.salu("s_mul_i32", s(sT1), s(sRowC), 28 * 1024)
    A.salu("s_add_u32", s(sT1), s(sT1), hex(WS_H))
    for ks in range(28):
        A.bload("buffer_load_dwordx4", v(vH + 4 * ks, 4), v(vL16), s(sWS, 4), s(sT1), offset=(ks % 4) * 1024, mods="sc1")
        if ks % 4 == 3:
            A.salu("s_add_u32", s(sT1), s(sT1), 4096)
    for u in range(7):
        A.bload("buffer_load_dwordx2", v(vST + 2 * u, 2), v(vT0), s(sWS, 4), s(sT0), offset=256 * u, mods="sc1")
    load_w2(late)
    A.valu("v_add_u32", v(vL16b), hex(57344), v(vL16))

    def w1_read(c4, ks, buf):
        off = (c4 * 28 + ks) * 1024
        if off >= 57344:
            A.dsr("ds_read_b128", v(vWF + 4 * buf, 4), v(vL16b), offset=off - 57344)
        else:
            A.dsr("ds_read_b128", v(vWF + 4 * buf, 4), v(vL16), offset=off)

    def c_stats():
        for u in range(1, 7):
            A.valu("v_add_f32", v(vST), v(vST), v(vST + 2 * u))
            A.valu("v_add_f32", v(vST + 1), v(vST + 1), v(vST + 2 * u + 1))
        sum_halves(A, v(vST + 2), v(vST), v(vT0))
        sum_halves(A, v(vST + 3), v(vST + 1), v(vT0))
        m, var, sg, rs = vST + 4, vST + 5, vST + 6, vST + 7
        A.valu("v_mul_f32", v(m), f32(-1.0 / 448), v(vST + 2))
        A.valu("v_mul_f32", v(var), f32(1.0 / 448), v(vST + 3))
        A.valu("v_fma_f32", v(var), "-" + v(m), v(m), v(var))
        A.valu("v_max_f32", v(var), 0, v(var))
        A.valu("v_add_f32", v(var), f32(1e-5), v(var))
        A.valu("v_rsq_f32", v(rs), v(var))
        A.valu("v_mul_f32", v(sg), v(var), v(rs))
        A.valu("v_cvt_pk_bf16_f32", v(vHE), v(m), v(m))
        A.valu("v_lshlrev_b32", v(vT0), 16, v(vHE))
        A.valu("v_sub_f32", v(vT0), v(m), v(vT0))
        A.valu("v_cvt_pk_bf16_f32", v(vHE + 1), v(vT0), v(sg))
        A.valu("v_and_b32", v(vT0), "0xffff0000", v(vHE + 1))
        A.valu("v_sub_f32", v(vT0), v(sg), v(vT0))
        A.valu("v_cvt_pk_bf16_f32", v(vHE + 2), v(vT0), 0)
        A.valu("v_mov_b32", v(vHE + 3), 0)
        A.valu("v_mul_f32", v(vC1), f32(GC1), v(rs))
        A.valu("v_mul_f32", v(vT0), v(rs), v(rs))
        A.valu("v_mul_f32", v(vT0), v(vT0), v(rs))
        A.valu("v_mul_f32", v(vC2), f32(GC2), v(vT0))
        A.salu("s_lshl_b32", s(sT0), s(sWv), 7)
        A.salu("s_add_u32", s(sT0), s(sT0), hex(L_RB))
        A.valu("v_lshl_add_u32", v(vT0), v(vR31), 2, s(sT0))
        A.dsw("ds_write_b32", v(vT0), v(rs))

    sH1 = 74
    A.salu("s_mul_i32", s(sH1), s(sRowC), 112)
    A.salu("s_lshl_b32", s(sT0), s(sJ), 3)
    A.salu("s_add_u32", s(sH1), s(sH1), s(sT0))
    A.salu("s_lshl_b32", s(sH1), s(sH1), 10)
    A.salu("s_add_u32", s(sH1), s(sH1), hex(WS_H1))

    def gelu_ops(c4, packed):
        ops = []
        ab = accC + 16 * c4
        if not packed:
            for i in range(0, 16, 2):
                t0, t1 = vG + (i % 8), vG + (i % 8) + 1
                for k, t in ((i, t0), (i + 1, t1)):
                    ops.append((4, lambda k=k, t=t: A.valu("v_mul_f32", v(t), v(ab + k), v(ab + k))))
                for k, t in ((i, t0), (i + 1, t1)):
                    ops.append((5, lambda k=k, t=t: A.valu("v_fma_f32", v(t), v(t), v(vC2), v(vC1))))
                for k, t in ((i, t0), (i + 1, t1)):
                    ops.append((4, lambda k=k, t=t: A.valu("v_mul_f32", v(t), v(t), v(ab + k))))
                for k, t in ((i, t0), (i + 1, t1)):
                    ops.append((8, lambda k=k, t=t: A.valu("v_exp_f32", v(t), v(t))))
                for k, t in ((i, t0), (i + 1, t1)):
                    ops.append((4, lambda k=k, t=t: A.valu("v_add_f32", v(t), "1.0", v(t))))
                for k, t in ((i, t0), (i + 1, t1)):
                    ops.append((8, lambda k=k, t=t: A.valu("v_rcp_f32", v(t), v(t))))
                for k, t in ((i, t0), (i + 1, t1)):
                    ops.append((4, lambda k=k, t=t: A.valu("v_mul_f32", v(t), v(t), v(ab + k))))
                ops.append((5, lambda i=i, t0=t0, t1=t1: A.valu("v_cvt_pk_bf16_f32", v(ab + i // 2), v(t0), v(t1))))
                if i == 6 or i == 14:
                    f = i // 8
                    ops.append((8, lambda f=f: A.bstore("buffer_store_dwordx4", v(ab + 4 * f, 4), v(vL16), s(sWS, 4), s(sH1),
                                                        offset=(2 * c4 + f) * 1024 % 4096, mods="sc1") if c4 < 2 else
                                A.bstore("buffer_store_dwordx4", v(ab + 4 * f, 4), v(vL16), s(sWS, 4), s(sH1 + 1),
                                         offset=(2 * c4 + f) * 1024 % 4096, mods="sc1")))
        return ops

    A.salu("s_add_u32", s(sH1 + 1), s(sH1), 4096)

    queue = []

    def fill(budget):
        while queue and budget > 0:
            c, fn = queue.pop(0)
            fn()
            budget -= c

    seq = [(ks, c4) for ks in range(28) for c4 in (0, 1)] + [(ks, 2) for ks in range(28)] + [(ks, 3) for ks in range(28)]
    NB = 4
    for n in range(3):
        w1_read(seq[n][1], seq[n][0], n % NB)
    for n, (ks, c4) in enumerate(seq):
        if n + 3 < len(seq):
            w1_read(seq[n + 3][1], seq[n + 3][0], (n + 3) % NB)
        ab = accC + 16 * c4
        A.mfma32(v(ab, 16), v(vWF + 4 * (n % NB), 4), v(vH + 4 * ks, 4), 0 if ks == 0 else v(ab, 16))
        if n == 54:
            c_stats()
        if ks == 27:
            A.mfma32(v(ab, 16), a(aW1E + 4 * c4, 4), v(vHE, 4), v(ab, 16))
            pend = c4
        if n == 57:
            queue.extend(gelu_ops(0, False))
            queue.extend(gelu_ops(1, False))
        if n == 56 + 28 + 1:
            queue.extend(gelu_ops(2, False))
        if n >= 57:
            fill(opt.get("c_budget", 20))
    queue.extend(gelu_ops(3, False))
    fill(10 ** 9)

    group_sync(1, "B")

    A.salu("s_lshl_b32", s(sT0), s(sRt2), 1)
    A.salu("s_add_u32", s(sT0), s(sT0), s(sWhi))
    A.salu("s_lshl_b32", s(sT0), s(sT0), 7)
    A.salu("s_add_u32", s(sT0), s(sT0), hex(L_RB))
    A.valu("v_lshl_add_u32", v(vT0), v(vR31), 2, s(sT0))
    sHa0, sHa1 = 68, 69
    for aa, sp in ((0, sHa0), (1, sHa1)):
        A.salu("s_xor_b32", s(sT0), s(sRow), aa)
        A.salu("s_mul_i32", s(sT0), s(sT0), 112)
        A.salu("s_mul_i32", s(sT1), s(sWv), 28)
        A.salu("s_add_u32", s(sT0), s(sT0), s(sT1))
        A.salu("s_lshl_b32", s(sT0), s(sT0), 10)
        A.salu("s_add_u32", s(sp), s(sT0), hex(WS_H1))
    vD = 32
    WIN = 16

    def d_load(ks):
        for aa, sp in ((0, sHa0), (1, sHa1)):
            A.bload("buffer_load_dwordx4", v(vD + 8 * (ks % WIN) + 4 * aa, 4), v(vL16), s(sWS, 4), s(sp), offset=(ks % 4) * 1024, mods="sc1")
        if ks % 4 == 3:
            A.salu("s_add_u32", s(sHa0), s(sHa0), 4096)
            A.salu("s_add_u32", s(sHa1), s(sHa1), 4096)

    for ks in range(WIN):
        d_load(ks)
    A.dsr("ds_read_b32", v(vRs2), v(vT0))
    A.waitcnt(lg=0)
    A.barrier()
    for ks in range(28):
        for aa in range(2):
            for bb in range(2):
                blk = acc + 16 * (2 * aa + bb)
                A.mfma32(v(blk, 16), a(aW2(ks, bb), 4), v(vD + 8 * (ks % WIN) + 4 * aa, 4), 0 if ks == 0 else v(blk, 16))
        if ks + WIN < 28:
            d_load(ks + WIN)
    reduce_tiles(32)
    for i in range(8):
        A.valu("v_lshlrev_b32", v(vT0), 16, v(vRes + i))
        A.valu("v_and_b32", v(vT1), "0xffff0000", v(vRes + i))
        A.valu("v_lshlrev_b32", v(vT2), 16, v(vB2 + i))
        A.valu("v_and_b32", v(vT3), "0xffff0000", v(vB2 + i))
        A.valu("v_fma_f32", v(vT2), v(acc + 2 * i), v(vRs2), v(vT2))
        A.valu("v_fma_f32", v(vT3), v(acc + 2 * i + 1), v(vRs2), v(vT3))
        A.valu("v_add_f32", v(vT0), v(vT0), v(vT2))
        A.valu("v_add_f32", v(vT1), v(vT1), v(vT3))
        A.valu("v_cvt_pk_bf16_f32", v(acc + 16 + i), v(vT0), v(vT1))
    o = acc + 16
    for qp in range(2):
        A.permlane32_swap(v(o + 4 * qp), v(o + 4 * qp + 2))
        A.permlane32_swap(v(o + 4 * qp + 1), v(o + 4 * qp + 3))
    A.valu("v_lshl_add_u32", v(vT0), v(vHH), 3, v(vT5))
    A.salu("s_lshl_b32", s(sT0), s(sCol), 6)
    for qp in range(2):
        A.bstore("buffer_store_dwordx4", v(o + 4 * qp, 4), v(vT0), s(sOUT, 4), s(sT0), offset=32 * qp)
    A.label("K2_DONE")
    A.misc("s_endpgm")
    A.label("K2_END")
    return A.text(), LDS_BYTES


HEADER = """; Kernarg layout for this problem (88 bytes, ptrs only, base s[0:1]):
"""


def kd(name, nv, acc_off, ns=102):
    return f""".amdhsa_kernel {name}
  .amdhsa_next_free_vgpr {nv}
  .amdhsa_next_free_sgpr {ns}
  .amdhsa_accum_offset {acc_off}
  .amdhsa_group_segment_fixed_size 0
  .amdhsa_kernarg_size 88
  .amdhsa_user_sgpr_count 2
  .amdhsa_user_sgpr_kernarg_segment_ptr 1
  .amdhsa_system_sgpr_workgroup_id_x 1
  .amdhsa_float_denorm_mode_32 3
.end_amdhsa_kernel
"""


def build(opt):
    k1, l1 = gen_k1(opt)
    k2, l2 = gen_k2(opt)
    out = HEADER
    out += f"; @launch kernel=k1_kernel grid=(256,1,1) block=(256,1,1) lds={l1}\n"
    out += f"; @launch kernel=k2_kernel grid=(224,1,1) block=(256,1,1) lds={l2}\n"
    out += '.amdgcn_target "amdgcn-amd-amdhsa--gfx950"\n.text\n'
    out += k1 + k2
    out += '.section .rodata,"a"\n.p2align 6\n'
    out += kd("k1_kernel", 256, 256)
    out += ".p2align 6\n"
    out += kd("k2_kernel", 512, 256)
    return out


if __name__ == "__main__":
    opt = {}
    outp = f"cdna_kernels/{NAME}.s"
    for arg in sys.argv[1:]:
        if arg.startswith("-o"):
            outp = arg[2:]
        else:
            k, val = arg.split("=")
            opt[k] = int(val)
    open(outp, "w").write(build(opt))
    print("wrote", outp)
```

```python
import math
import struct
import sys
import os

sys.path.insert(0, os.path.dirname(os.path.abspath(__file__)))
from asmlib import Asm, v, a, s

NAME = "sequential_preLN__linear_attn_block__dense_activation_gelu__prompt"

WS_KV = 0
WS_FLAGS = 0x10000
WS_HST = 0x28000
WS_WO = 0x60000
WS_W1 = 0xD0000
WS_W2 = WS_W1 + 56 * 29 * 1024
WS_PQ = WS_W2 + 14 * 112 * 1024
WS_H = WS_PQ + 64 * 32 * 1024
WS_H1 = WS_H + 64 * 28 * 1024
WS_XF = WS_H1 + 64 * 112 * 1024
WS_STAMP = WS_XF + 64 * 28 * 1024
WS_END = WS_STAMP + 2 * 256 * 8 * 16 * 8
OOB = 0x7F000000

LOG2E = 1.4426950408889634
GC1 = -2.0 * math.sqrt(2.0 / math.pi) * LOG2E
GC2 = GC1 * 0.044715


def f32(x):
    return "0x%08x" % struct.unpack("<I", struct.pack("<f", x))[0]


def make_srd(A, d, b, size):
    A.salu("s_mov_b32", s(d), s(b))
    A.salu("s_and_b32", s(d + 1), s(b + 1), "0xffff")
    A.salu("s_mov_b32", s(d + 2), size if isinstance(size, str) else hex(size))
    A.salu("s_mov_b32", s(d + 3), "0x00020000")


def bcast_hi(A, dst, src, tmp):
    A.valu("v_mov_b32", tmp, src)
    A.valu("v_mov_b32", dst, src)
    A.permlane32_swap(tmp, dst)


def sum_halves(A, dst, src, tmp):
    A.valu("v_mov_b32", tmp, src)
    A.valu("v_mov_b32", dst, src)
    A.permlane32_swap(tmp, dst)
    A.valu("v_add_f32", dst, dst, tmp)


def stamp(A, opt, idx):
    if not opt.get("stamps") or idx is None:
        return
    assert 0 <= idx < 8
    A.misc(f"s_memrealtime s[{84 + 2 * idx}:{85 + 2 * idx}]")


def stamp_flush(A, opt, kern, sWS, sWv, vt, va, stmp):
    if not opt.get("stamps"):
        return
    A.waitcnt(vm=0, lg=0)
    A.misc("s_memrealtime s[100:101]")
    A.misc("s_waitcnt lgkmcnt(0)")
    A.salu("s_lshl_b32", s(stmp), "s2", 3)
    A.salu("s_add_u32", s(stmp), s(stmp), s(sWv))
    A.salu("s_lshl_b32", s(stmp), s(stmp), 7)
    A.salu("s_add_u32", s(stmp), s(stmp), hex(WS_STAMP + kern * 256 * 8 * 128))
    A.valu("v_mov_b32", v(va), 0)
    for idx in range(9):
        A.valu("v_mov_b32", v(vt + 2 * idx), f"s{84 + 2 * idx}")
        A.valu("v_mov_b32", v(vt + 2 * idx + 1), f"s{85 + 2 * idx}")
        A.bstore("buffer_store_dwordx2", v(vt + 2 * idx, 2), v(va), s(sWS, 4), s(stmp), offset=8 * idx)


def pop(q, n=1):
    for _ in range(n):
        if q:
            q.pop(0)()


def gen_k1(opt):
    A = Asm()
    KN = "k1_kernel"
    STM = {0: "", 1: "sc1", 2: "nt", 3: "sc0 sc1"}[opt.get("stm", 1)]
    XB = 1040
    XW = 4 * XB
    WOFF = 4 * XW
    SLOT = WOFF + 12288
    NSLOT = 4
    L_RP = NSLOT * SLOT
    L_SCR = L_RP + 16384
    L_CS2 = L_SCR
    L_RS = L_SCR + 1536
    L_XE = L_SCR + 2048
    L_CS1 = L_SCR + 3072
    LDS_BYTES = L_CS1 + 1024

    sX, sW, sWS, sDBG, sRP, sB1 = 28, 32, 36, 40, 44, 48
    sWv, sRb, sH, sKc, sT0, sT1, sT2, sT3 = 52, 53, 54, 55, 56, 57, 58, 59
    sXo, sWo = 60, 61
    sRS0, sRSTEP, sCls, sRRS, sP0, sKh, sCt = 62, 63, 64, 65, 66, 67, 68
    sHq = 69
    sPC = 70
    sMx, sMw = 72, 73
    sC_eps6 = 74
    sC_l2e = 76
    sU, sUp, sI, sW4 = 78, 79, 80, 81
    sCnt, sM4 = 82, 83
    sWall = 27

    A.raw(f".globl {KN}")
    A.raw(".p2align 8")
    A.raw(f".type {KN},@function")
    A.raw(f"{KN}:")
    A.scmp("s_cmp_ge_u32", "s2", 256)
    A.misc("s_cbranch_scc1 K1_DONE")
    SM = {"b0": 1, "b2": 2, "b6": 3, "loop": 4, "e1": 5, "e2": 6, "at": 7}
    if opt.get("stamps") == 4:
        SM = {"b0": 1, "loop": 2}
    if opt.get("stamps") == 5:
        SM = {"pre0": 1, "pre1": 2, "pre2": 3, "b0": 4, "b1": 5}
    ST = lambda k: stamp(A, opt, SM.get(k))
    stamp(A, opt, 0)
    A.sload("s_load_dwordx16", s(4, 16), s(0, 2), 0)
    A.sload("s_load_dwordx4", s(20, 4), s(0, 2), 64)
    A.sload("s_load_dwordx2", s(24, 2), s(0, 2), 80)

    vL, vT0, vT1, vT2, vT3, vT4, vT5 = 1, 2, 3, 4, 5, 6, 7
    vXo = 8
    vWo = 12
    vRPo = 15
    vXa = 16
    vWa = 24
    vPad = 32
    vOnes2 = 34
    vSel = 36
    vRPa = 40
    vL16 = 41
    vB1 = 42
    vFlag = 43
    vZero = 44
    vXF = 48
    vWF = 56
    acc0, acc1 = 72, 88
    accSS = 88
    accCS = 104
    accRC = 48
    vRF = 52
    vR = 48
    vE = 112
    vP = 136

    A.valu("v_and_b32", v(vL), 63, "v0")
    A.valu("v_lshrrev_b32", v(vT0), 6, "v0")
    A.readfirstlane(s(sWall), v(vT0))
    A.salu("s_and_b32", s(sWv), s(sWall), 3)
    A.salu("s_sub_u32", s(26), s(sWall), 4)
    A.salu("s_and_b32", s(sT0), "s2", 7)
    A.salu("s_lshr_b32", s(sT1), "s2", 3)
    A.salu("s_lshl_b32", s(sT2), s(sT0), 1)
    A.salu("s_and_b32", s(sT3), s(sT1), 1)
    A.salu("s_add_u32", s(sRb), s(sT2), s(sT3))
    A.salu("s_lshr_b32", s(sH), s(sT1), 1)
    A.salu("s_lshr_b32", s(sKc), s(sH), 1)
    A.salu("s_mul_i32", s(sKc), s(sKc), opt.get("ca", 1))
    A.salu("s_mul_i32", s(sT3), s(sT3), opt.get("cb", 3))
    A.salu("s_add_u32", s(sKc), s(sKc), s(sT3))
    A.salu("s_mul_i32", s(sT0), s(sKc), 37)
    A.salu("s_lshr_b32", s(sT0), s(sT0), 8)
    A.salu("s_mul_i32", s(sT0), s(sT0), 7)
    A.salu("s_sub_u32", s(sKc), s(sKc), s(sT0))
    A.salu("s_xor_b32", s(sHq), s(sH), 1)
    A.salu("s_mul_i32", s(sMx), s(sWv), XW)
    A.salu("s_mul_i32", s(sMw), s(sWv), 3072)
    A.salu("s_add_u32", s(sMw), s(sMw), WOFF)
    A.salu("s_lshl_b32", s(sM4), s(sWv), 12)
    A.valu("v_lshlrev_b32", v(vL16), 4, v(vL))

    def lds_addrs():
        A.valu("v_and_b32", v(vT0), 31, v(vL))
        A.valu("v_lshrrev_b32", v(vT1), 5, v(vL))
        A.valu("v_lshrrev_b32", v(vT2), 3, v(vT0))
        A.valu("v_mul_u32_u24", v(vT2), XB, v(vT2))
        A.valu("v_and_b32", v(vT3), 7, v(vT0))
        A.valu("v_lshl_add_u32", v(vT2), v(vT3), 7, v(vT2))
        A.valu("v_lshl_add_u32", v(vT2), v(vT1), 4, v(vT2))
        A.valu("v_add_u32", v(vT2), s(sMx), v(vT2))
        A.valu("v_bfe_u32", v(vT3), v(vT0), 1, 1)
        for p in range(4):
            A.salu("s_add_u32", s(sT0), s(sWv), p)
            A.salu("s_bfe_u32", s(sT1), s(sT0), "0x10001")
            A.salu("s_and_b32", s(sT0), s(sT0), 1)
            A.salu("s_lshl_b32", s(sT0), s(sT0), 5)
            A.valu("v_xor_b32", v(vT4), s(sT1), v(vT3))
            A.valu("v_lshl_add_u32", v(vT4), v(vT4), 6, v(vT2))
            A.valu("v_add_u32", v(vXa + p), s(sT0), v(vT4))
            A.valu("v_add_u32", v(vXa + 4 + p), hex(2 * SLOT), v(vXa + p))
        A.valu("v_bfe_u32", v(vT2), v(vL), 2, 2)
        A.valu("v_lshl_add_u32", v(vT2), v(vT1), 3, v(vT2))
        A.valu("v_mul_u32_u24", v(vT2), 192, v(vT2))
        A.valu("v_bfe_u32", v(vT3), v(vL), 4, 1)
        A.valu("v_lshl_add_u32", v(vT2), v(vT3), 5, v(vT2))
        A.valu("v_and_b32", v(vT4), 3, v(vL))
        A.valu("v_lshl_add_u32", v(vT2), v(vT4), 3, v(vT2))
        for p in range(4):
            A.salu("s_add_u32", s(sT0), s(sWv), p)
            A.salu("s_and_b32", s(sT0), s(sT0), 3)
            A.salu("s_mul_i32", s(sT0), s(sT0), 3072)
            A.salu("s_add_u32", s(sT0), s(sT0), WOFF)
            A.valu("v_add_u32", v(vWa + p), s(sT0), v(vT2))
            A.valu("v_add_u32", v(vWa + 4 + p), hex(2 * SLOT), v(vWa + p))
        A.valu("v_mov_b32", v(vOnes2), "0x3f803f80")
        A.valu("v_mov_b32", v(vOnes2 + 1), "0x3f803f80")
        A.valu("v_and_b32", v(vT2), 1, v(vL))
        A.cmp("v_cmp_eq_u32", "vcc", v(vT2), v(vT3))
        for i in range(4):
            A.cndmask(v(vSel + i), 0, v(vOnes2))
        A.salu("s_mov_b32", s(sC_eps6), f32(1e-6))
        A.salu("s_mov_b32", s(sC_eps6 + 1), f32(1e-6))
        A.salu("s_mov_b32", s(sC_l2e), f32(LOG2E))
        A.salu("s_mov_b32", s(sC_l2e + 1), f32(LOG2E))

    def read_ops(it, p, buf, segs):
        st = (it % NSLOT) // 2
        off = ((it % NSLOT) % 2) * SLOT
        ops = [lambda: A.dsr("ds_read_b128", v(vXF + 4 * buf, 4), v(vXa + 4 * st + p), offset=off)]
        for k, seg in enumerate(segs):
            ops.append(lambda k=k, seg=seg: A.dsr("ds_read_b64_tr_b16", v(vWF + 8 * buf + 4 * k, 2), v(vWa + 4 * st + p), offset=off + seg * 64))
            ops.append(lambda k=k, seg=seg: A.dsr("ds_read_b64_tr_b16", v(vWF + 8 * buf + 4 * k + 2, 2), v(vWa + 4 * st + p), offset=off + seg * 64 + 768))
        return ops

    def colsum_write(segs):
        A.valu("v_bfe_u32", v(vT3), v(vL), 4, 1)
        A.cmp("v_cmp_eq_u32", "vcc", 1, v(vT3))
        A.valu("v_and_b32", v(vT0), 31, v(vL))
        A.valu("v_mul_u32_u24", v(vT4), 48, v(vT0))
        A.salu("s_lshl_b32", s(sT0), s(sWv), 2)
        A.salu("s_add_u32", s(sT0), s(sT0), hex(L_CS2))
        A.valu("v_add_u32", v(vT2), s(sT0), v(vT4))
        A.valu("v_add_u32", v(vT4), hex(L_CS2), v(vT4))
        for k, seg in enumerate(segs):
            A.cndmask(v(vE + k), v(accCS + 4 * k), v(accCS + 4 * k + 1))
            A.dsw("ds_write_b32", v(vT2), v(vE + k), offset=16 * seg)

    def we_frag(c, dst):
        A.valu("v_add_f32", v(c), v(c), v(c + 1))
        A.valu("v_add_f32", v(c + 2), v(c + 2), v(c + 3))
        A.valu("v_add_f32", v(c), v(c), v(c + 2))
        A.cndmask(v(c), 0, v(c))
        A.valu("v_cvt_pk_bf16_f32", v(dst + 1), v(c), 0)
        A.valu("v_lshlrev_b32", v(c + 2), 16, v(dst + 1))
        A.valu("v_sub_f32", v(c + 2), v(c), v(c + 2))
        A.valu("v_cvt_pk_bf16_f32", v(dst), v(c), v(c + 2))
        A.valu("v_mov_b32", v(dst + 2), 0)
        A.valu("v_mov_b32", v(dst + 3), 0)

    def phi_pack(acc, rs_pair, dstbase):
        for i in range(0, 16, 2):
            A.valu("v_pk_fma_f32", v(acc + i, 2), v(acc + i, 2), rs_pair(i), s(sC_eps6, 2))
        for i in range(0, 16, 2):
            A.valu("v_pk_mul_f32", v(vP + i, 2), v(acc + i, 2), s(sC_l2e, 2))
        for i in range(16):
            A.valu("v_exp_f32", v(vP + i), v(vP + i), mods="clamp")
            A.valu("v_max_f32", v(acc + i), s(sC_eps6), v(acc + i))
        for i in range(0, 16, 2):
            A.valu("v_pk_add_f32", v(acc + i, 2), v(acc + i, 2), v(vP + i, 2))
        for i in range(0, 16, 2):
            A.valu("v_cvt_pk_bf16_f32", v(dstbase + i // 2), v(acc + i), v(acc + i + 1))

    accRC, vRF = 48, 52
    sDst, sSrc, sExt, sB1o, sKhm, sPs, sG1 = 4, 8, 9, 10, 11, 12, 20
    vRa, vRb, vB1o, vExo = vE, vE + 1, vE + 2, vE + 3

    def rp_u0():
        make_srd(A, sB1, 14, 1792 * 2)
        A.salu("s_lshl_b32", s(sUp), s(sRb), 4)
        A.salu("s_add_u32", s(sUp), s(sUp), s(sH))
        A.salu("s_lshr_b32", s(sUp), s(sUp), 1)
        A.salu("s_mov_b32", s(sCls), 2)
        A.scmp("s_cmp_lt_u32", s(sUp), 112)
        A.salu("s_cselect_b32", s(sCls), 1, s(sCls))
        A.scmp("s_cmp_lt_u32", s(sUp), 56)
        A.salu("s_cselect_b32", s(sCls), 0, s(sCls))
        A.salu("s_mov_b32", s(sRP), "s8")
        A.salu("s_mov_b32", s(sRP + 1), "s9")
        A.salu("s_mov_b32", s(sRP + 2), hex(448 * 896))
        A.salu("s_movk_i32", s(sRSTEP), 64)
        A.salu("s_movk_i32", s(sRRS), 896)
        A.scmp("s_cmp_eq_u32", s(sCls), 1)
        A.salu("s_cselect_b32", s(sRP), "s16", s(sRP))
        A.salu("s_cselect_b32", s(sRP + 1), "s17", s(sRP + 1))
        A.salu("s_cselect_b32", s(sRP + 2), hex(1792 * 896), s(sRP + 2))
        A.salu("s_cselect_b32", s(sRSTEP), hex(16 * 896), s(sRSTEP))
        A.scmp("s_cmp_eq_u32", s(sCls), 0)
        A.salu("s_cselect_b32", s(sRP), "s12", s(sRP))
        A.salu("s_cselect_b32", s(sRP + 1), "s13", s(sRP + 1))
        A.salu("s_cselect_b32", s(sRP + 2), hex(448 * 3584), s(sRP + 2))
        A.salu("s_cselect_b32", s(sRSTEP), hex(16 * 3584), s(sRSTEP))
        A.salu("s_cselect_b32", s(sRRS), hex(3584), s(sRRS))
        A.salu("s_and_b32", s(sRP + 1), s(sRP + 1), "0xffff")
        A.salu("s_mov_b32", s(sRP + 3), "0x00020000")
        A.salu("s_and_b32", s(sPs), s(sH), 1)

    def rp_u1():
        A.salu("s_sub_u32", s(sCt), s(sUp), 112)
        A.salu("s_mov_b32", s(sKh), s(sPs))
        A.salu("s_mul_i32", s(sRS0), s(sCt), 28 * 896)
        A.salu("s_mul_i32", s(sT0), s(sPs), 16 * 896)
        A.salu("s_add_u32", s(sRS0), s(sRS0), s(sT0))
        A.salu("s_sub_u32", s(sT0), s(sUp), 56)
        A.salu("s_lshr_b32", s(sT1), s(sT0), 3)
        A.salu("s_lshl_b32", s(sT1), s(sT1), 1)
        A.salu("s_add_u32", s(sT1), s(sT1), s(sPs))
        A.salu("s_and_b32", s(sT0), s(sT0), 7)
        A.salu("s_mul_i32", s(sT2), s(sT0), 224 * 896)
        A.salu("s_lshl_b32", s(sT3), s(sT1), 6)
        A.salu("s_add_u32", s(sT2), s(sT2), s(sT3))
        A.scmp("s_cmp_eq_u32", s(sCls), 1)
        A.salu("s_cselect_b32", s(sCt), s(sT1), s(sCt))
        A.salu("s_cselect_b32", s(sKh), s(sT0), s(sKh))
        A.salu("s_cselect_b32", s(sRS0), s(sT2), s(sRS0))
        A.salu("s_lshr_b32", s(sT1), s(sUp), 1)
        A.salu("s_lshl_b32", s(sT1), s(sT1), 1)
        A.salu("s_add_u32", s(sT1), s(sT1), s(sPs))
        A.salu("s_and_b32", s(sT0), s(sUp), 1)
        A.salu("s_mul_i32", s(sT2), s(sT0), 224 * 3584)
        A.salu("s_lshl_b32", s(sT3), s(sT1), 6)
        A.salu("s_add_u32", s(sT2), s(sT2), s(sT3))
        A.scmp("s_cmp_eq_u32", s(sCls), 0)
        A.salu("s_cselect_b32", s(sCt), s(sT1), s(sCt))
        A.salu("s_cselect_b32", s(sKh), s(sT0), s(sKh))
        A.salu("s_cselect_b32", s(sRS0), s(sT2), s(sRS0))
        A.salu("s_mul_i32", s(sT0), s(sWv), s(sRSTEP))
        A.salu("s_add_u32", s(sSrc), s(sT0), s(sRS0))
        A.salu("s_lshl_b32", s(sB1o), s(sCt), 6)
        A.salu("s_mul_i32", s(sT0), s(sCt), 29 * 1024)
        A.salu("s_add_u32", s(sT0), s(sT0), hex(WS_W1 + 28 * 1024))
        A.scmp("s_cmp_eq_u32", s(sCls), 0)
        A.salu("s_cselect_b32", s(sExt), s(sT0), hex(OOB))
        A.salu("s_lshl_b32", s(sRSTEP), s(sRSTEP), 2)

    def rp_dst(n):
        A.salu("s_add_u32", s(sI), s(sWv), 4 * n)
        A.salu("s_lshr_b32", s(sT0), s(sI), 1)
        A.salu("s_lshl_b32", s(sT0), s(sT0), 6)
        A.salu("s_lshl_b32", s(sT1), s(sCt), 2)
        A.salu("s_add_u32", s(sT0), s(sT0), s(sT1))
        A.salu("s_lshl_b32", s(sT1), s(sKh), 1)
        A.salu("s_add_u32", s(sT0), s(sT0), s(sT1))
        A.salu("s_lshr_b32", s(sT1), s(sCt), 2)
        A.salu("s_xor_b32", s(sT1), s(sT1), s(sI))
        A.salu("s_and_b32", s(sT1), s(sT1), 1)
        A.salu("s_add_u32", s(sT0), s(sT0), s(sT1))
        A.salu("s_add_u32", s(sT0), s(sT0), WS_WO >> 10)
        A.salu("s_mul_i32", s(sP0), s(sKh), 14)
        A.salu("s_add_u32", s(sP0), s(sP0), s(sI))
        A.salu("s_lshr_b32", s(sT1), s(sCt), 1)
        A.salu("s_lshl_b32", s(sT1), s(sT1), 2)
        A.salu("s_and_b32", s(sT2), s(sP0), 3)
        A.salu("s_add_u32", s(sT1), s(sT1), s(sT2))
        A.salu("s_mul_i32", s(sT1), s(sT1), 28)
        A.salu("s_lshr_b32", s(sT2), s(sP0), 3)
        A.salu("s_add_u32", s(sT1), s(sT1), s(sT2))
        A.salu("s_bfe_u32", s(sT2), s(sP0), "0x10002")
        A.salu("s_mul_i32", s(sT2), s(sT2), 14)
        A.salu("s_add_u32", s(sT1), s(sT1), s(sT2))
        A.salu("s_lshl_b32", s(sT1), s(sT1), 1)
        A.salu("s_xor_b32", s(sT2), s(sCt), s(sP0))
        A.salu("s_and_b32", s(sT2), s(sT2), 1)
        A.salu("s_add_u32", s(sT1), s(sT1), s(sT2))
        A.salu("s_add_u32", s(sT1), s(sT1), WS_W2 >> 10)
        A.scmp("s_cmp_eq_u32", s(sCls), 1)
        A.salu("s_cselect_b32", s(sT0), s(sT1), s(sT0))
        A.salu("s_mul_i32", s(sT1), s(sCt), 29)
        A.salu("s_add_u32", s(sT1), s(sT1), s(sP0))
        A.salu("s_add_u32", s(sT1), s(sT1), WS_W1 >> 10)
        A.scmp("s_cmp_eq_u32", s(sCls), 0)
        A.salu("s_cselect_b32", s(sT0), s(sT1), s(sT0))
        A.salu("s_lshl_b32", s(sDst + n), s(sT0), 10)
        if n == 3:
            A.scmp("s_cmp_lt_u32", s(sWv), 2)
            A.salu("s_cselect_b32", s(sDst + n), s(sDst + n), hex(OOB))

    def rp_vec():
        A.valu("v_lshrrev_b32", v(vT1), 5, v(vL))
        A.valu("v_bfe_u32", v(vT3), v(vL), 4, 1)
        A.valu("v_and_b32", v(vT4), 3, v(vL))
        A.valu("v_bfe_u32", v(vT2), v(vL), 2, 2)
        A.valu("v_lshl_add_u32", v(vT2), v(vT1), 2, v(vT2))
        A.valu("v_lshlrev_b32", v(vT2), 6, v(vT2))
        A.valu("v_lshl_add_u32", v(vT2), v(vT3), 5, v(vT2))
        A.valu("v_lshl_add_u32", v(vT2), v(vT4), 3, v(vT2))
        A.salu("s_add_u32", s(sT0), s(sM4), hex(L_RP))
        A.valu("v_add_u32", v(vRPa), s(sT0), v(vT2))
        A.cmp("v_cmp_eq_u32", s(sG1, 2), 1, v(vT3))
        A.valu("v_lshrrev_b32", v(vT0), 2, v(vL))
        A.valu("v_mul_lo_u32", v(vT3), v(vT0), s(sRRS))
        A.valu("v_lshl_add_u32", v(vT3), v(vT4), 4, v(vT3))
        A.salu("s_lshl_b32", s(sT0), s(sCls), 1)
        A.salu("s_add_u32", s(sT0), s(sT0), s(sPs))
        A.scmp("s_cmp_eq_u32", s(sT0), 5)
        A.salu("s_cselect_b32", s(sT3), 12, 64)
        A.cmp("v_cmp_gt_u32", "vcc", s(sT3), v(vT0))
        A.valu("v_mov_b32", v(vT2), hex(OOB))
        A.cndmask(v(vRPo), v(vT2), v(vT3))
        A.valu("v_and_b32", v(vT0), 31, v(vL))
        A.valu("v_lshlrev_b32", v(vB1o), 1, v(vT0))
        A.valu("v_lshlrev_b32", v(vT4), 2, v(vT0))
        A.valu("v_add_u32", v(vRb), hex(L_CS1), v(vT4))
        A.valu("v_mov_b32", v(vRa), hex(L_CS1 + 128))
        A.cmp("v_cmp_eq_u32", "vcc", s(sKh), v(vT1))
        A.cndmask(v(vExo), v(vT2), v(vL16))
        A.scmp("s_cmp_eq_u32", s(sKh), 0)
        A.salu("s_cselect_b32", s(sKhm), -1, 0)

    rp_tok = []

    def rp_dma():
        for i in range(4):
            if i == 3:
                A.scmp("s_cmp_lt_u32", s(sWv), 2)
                A.salu("s_cselect_b32", s(sSrc), s(sSrc), hex(OOB))
            A.salu("s_add_u32", "m0", s(sM4), hex(L_RP + i * 1024))
            rp_tok.append(A.dma(v(vRPo), s(sRP, 4), s(sSrc)))
            if i < 3:
                A.salu("s_add_u32", s(sSrc), s(sSrc), s(sRSTEP))

    def rp_part1(wait=True):
        if wait:
            A.wait_vm_token(rp_tok[3])
        for i in range(4):
            A.dsr("ds_read_b64_tr_b16", v(vRF + 4 * i, 2), v(vRPa), offset=i * 1024)
            A.dsr("ds_read_b64_tr_b16", v(vRF + 4 * i + 2, 2), v(vRPa), offset=i * 1024 + 512)
        for i in range(4):
            A.bstore("buffer_store_dwordx4", v(vRF + 4 * i, 4), v(vL16), s(sWS, 4), s(sDst + i), mods=STM)
            A.mfma("v_mfma_f32_16x16x32_bf16", v(accRC, 4), v(vSel, 4), v(vRF + 4 * i, 4), 0 if i == 0 else v(accRC, 4))
        A.cndmask(v(vT2), v(accRC), v(accRC + 1), s(sG1, 2))
        A.salu("s_mov_b32", "exec_hi", 0)
        A.dsw("ds_add_f32", v(vRb), v(vT2))
        A.valu("v_mov_b32", v(vT3), 1)
        A.waitcnt(lg=0)
        A.salu("s_mov_b64", "exec", 1)
        A.dsr("ds_add_rtn_u32", v(vT1), v(vRa) + ", " + v(vT3), mods="")
        A.salu("s_mov_b64", "exec", -1)
        A.readfirstlane(s(sT1), v(vT1))
        A.scmp("s_cmp_eq_u32", s(sT1), 3)
        A.salu("s_cselect_b32", s(sExt), s(sExt), hex(OOB))

    def rp_part2():
        e = vE + 4
        A.dsr("ds_read_b32", v(e), v(vRb))
        A.valu("v_lshlrev_b32", v(e + 7), 16, v(vB1))
        A.valu("v_and_b32", v(e + 7), s(sKhm), v(e + 7))
        A.valu("v_cvt_pk_bf16_f32", v(e + 1), v(e), v(e))
        A.valu("v_lshlrev_b32", v(e + 1), 16, v(e + 1))
        A.valu("v_sub_f32", v(e + 1), v(e), v(e + 1))
        A.valu("v_cvt_pk_bf16_f32", v(e + 4), v(e), v(e + 1))
        A.valu("v_cvt_pk_bf16_f32", v(e + 5), v(e), v(e + 7))
        A.valu("v_lshrrev_b32", v(e + 6), 16, v(e + 7))
        A.valu("v_mov_b32", v(e + 7), 0)
        A.bstore("buffer_store_dwordx4", v(e + 4, 4), v(vExo), s(sWS, 4), s(sExt), mods=STM)

    A.scmp("s_cmp_ge_u32", s(sWall), 8)
    A.misc("s_cbranch_scc1 K1_TEAM_Q")
    A.scmp("s_cmp_ge_u32", s(sWall), 4)
    A.misc("s_cbranch_scc1 K1_TEAM_KV")
    saved = (list(A.vm), list(A.lg), set(A.smem_pending))
    if opt.get("lprio", 1):
        A.misc("s_setprio 3")

    A.salu("s_lshl_b32", s(sT0), s(sRb), 7)
    A.salu("s_lshl_b32", s(sT1), s(sWv), 5)
    A.salu("s_add_u32", s(sT0), s(sT0), s(sT1))
    A.salu("s_movk_i32", s(sT1), 896)
    A.valu("v_lshrrev_b32", v(vT0), 3, v(vL))
    A.valu("v_bfe_u32", v(vT1), v(vL), 2, 1)
    A.valu("v_bfe_u32", v(vT3), v(vL), 4, 1)
    A.valu("v_xor_b32", v(vT1), v(vT1), v(vT3))
    A.valu("v_and_b32", v(vT3), 3, v(vL))
    A.valu("v_lshl_add_u32", v(vT3), v(vT1), 2, v(vT3))
    A.valu("v_add_u32", v(vT2), s(sT0), v(vT0))
    A.valu("v_mul_lo_u32", v(vT2), v(vT2), s(sT1))
    A.valu("v_lshl_add_u32", v(vXo), v(vT3), 4, v(vT2))
    for b in range(1, 4):
        A.valu("v_add_u32", v(vXo + b), (8 * 896 - XB) * b, v(vXo))
    A.salu("s_mul_i32", s(sT2), s(sWv), 16 * 2688)
    A.salu("s_mul_i32", s(sT0), s(sH), 56)
    A.salu("s_add_u32", s(sT0), s(sT0), s(sT2))
    A.salu("s_mul_i32", s(sT3), s(sHq), 56)
    A.salu("s_add_u32", s(sT3), s(sT3), s(sT2))
    A.valu("v_mov_b32", v(vT0), s(sT0))
    A.valu("v_mov_b32", v(vT1), s(sT3))
    A.salu("s_movk_i32", s(sT2), 2688)
    for j in range(3):
        A.valu("v_add_u32", v(vT2), 64 * j, v(vL))
        A.valu("v_mul_u32_u24", v(vT3), 43691, v(vT2))
        A.valu("v_lshrrev_b32", v(vT3), 19, v(vT3))
        A.valu("v_mul_u32_u24", v(vT4), 12, v(vT3))
        A.valu("v_sub_u32", v(vT2), v(vT2), v(vT4))
        A.valu("v_mul_lo_u32", v(vT3), v(vT3), s(sT2))
        A.cmp("v_cmp_gt_u32", "vcc", 4, v(vT2))
        A.valu("v_lshrrev_b32", v(vT4), 2, v(vT2))
        A.valu("v_mul_lo_u32", v(vT4), v(vT4), s(sT1))
        A.valu("v_and_b32", v(vT2), 3, v(vT2))
        A.valu("v_lshl_add_u32", v(vT3), v(vT2), 4, v(vT3))
        A.cndmask(v(vT2), v(vT0), v(vT1))
        A.valu("v_add3_u32", v(vT3), v(vT3), v(vT4), v(vT2))
        if j:
            A.valu("v_subrev_u32", v(vWo + j), 1024 * j, v(vT3))
        else:
            A.valu("v_mov_b32", v(vWo + j), v(vT3))
    make_srd(A, sX, 4, 2048 * 896)
    make_srd(A, sW, 6, 448 * 2688)
    make_srd(A, sWS, 24, WS_END)
    chunk_tok = {}

    def chunk_ops(it):
        slot = (it % NSLOT) * SLOT
        ops = []

        def x_op(b):
            if b == 0:
                A.salu("s_lshl_b32", s(sXo), s(sKc), 7)
                A.salu("s_mul_i32", s(sWo), s(sKc), 64 * 2688)
                if opt.get("abl") in (2, 4):
                    A.salu("s_mov_b32", s(sXo), hex(OOB))
                if opt.get("abl") in (2, 3):
                    A.salu("s_mov_b32", s(sWo), hex(OOB))
                A.salu("s_add_u32", "m0", s(sMx), hex(slot))
            A.dma(v(vXo + b), s(sX, 4), s(sXo), offset=XB * b)

        def w_op(j):
            if j == 0:
                A.salu("s_add_u32", "m0", s(sMw), hex(slot))
            tk = A.dma(v(vWo + j), s(sW, 4), s(sWo), offset=1024 * j)
            if j == 2:
                chunk_tok[it] = tk
                A.salu("s_add_u32", s(sKc), s(sKc), 1)
                A.scmp("s_cmp_eq_u32", s(sKc), 7)
                A.salu("s_cselect_b32", s(sKc), 0, s(sKc))
        for b in range(4):
            ops.append(lambda b=b: x_op(b))
        for j in range(3):
            ops.append(lambda j=j: w_op(j))
        return ops

    NPRE = opt.get("k1_pre", 2)
    for it in range(NPRE):
        for op in chunk_ops(it):
            op()
    A.valu("v_and_b32", v(vT2), 15, v(vL))
    A.valu("v_mul_u32_u24", v(vT2), 192, v(vT2))
    A.salu("s_add_u32", s(sT0), s(sMw), 56)
    A.valu("v_add_u32", v(vPad), s(sT0), v(vT2))
    A.valu("v_add_u32", v(vPad + 1), hex(2 * SLOT), v(vPad))
    A.valu("v_mov_b32", v(vOnes2), "0x3f803f80")
    A.valu("v_mov_b32", v(vOnes2 + 1), "0x3f803f80")
    A.valu("v_lshrrev_b32", v(vT1), 5, v(vL))
    A.valu("v_bfe_u32", v(vT3), v(vL), 4, 1)
    A.valu("v_and_b32", v(vT4), 3, v(vL))
    A.valu("v_and_b32", v(vT2), 1, v(vL))
    A.cmp("v_cmp_eq_u32", "vcc", v(vT2), v(vT3))
    for i in range(4):
        A.cndmask(v(vSel + i), 0, v(vOnes2))

    def l_ready(it):
        A.wait_vm_token(chunk_tok[it])
        st = (it % NSLOT) // 2
        A.dsw("ds_write_b64", v(vPad + st), v(vOnes2, 2), offset=((it % NSLOT) % 2) * SLOT)
        A.waitcnt(lg=0)
        A.barrier()
        ST(f"b{it}")

    l_ready(0)
    for op in chunk_ops(NPRE):
        op()
    make_srd(A, sDBG, 22, 256)
    for i in range(4):
        A.valu("v_mov_b32", v(vZero + i), 0)
    A.salu("s_lshl_b32", s(sT0), s(sRb), 4)
    A.salu("s_add_u32", s(sT0), s(sT0), s(sH))
    A.salu("s_lshl_b32", s(sT1), s(sT0), 12)
    A.scmp("s_cmp_lt_u32", s(sT0), 40)
    A.salu("s_cselect_b32", s(sT1), s(sT1), hex(OOB))
    A.valu("v_and_b32", v(vT0), 255, "v0")
    A.valu("v_lshlrev_b32", v(vT0), 4, v(vT0))
    A.bstore("buffer_store_dwordx4", v(vZero, 4), v(vT0), s(sWS, 4), s(sT1), mods="sc1")

    def kv_flag():
        A.salu("s_lshl_b32", s(sT0), s(sH), 2)
        A.scmp("s_cmp_eq_u32", s(sRb), 0)
        A.salu("s_cselect_b32", s(sT0), s(sT0), hex(OOB))
        A.scmp("s_cmp_eq_u32", s(sWv), 0)
        A.salu("s_cselect_b32", s(sT0), s(sT0), hex(OOB))
        A.valu("v_mov_b32", v(vT0), 1)
        A.valu("v_mov_b32", v(vT2), 0)
        A.bstore("buffer_store_dword", v(vT0), v(vT2), s(sDBG, 4), s(sT0), mods="sc1")

    units = [[rp_u0, rp_u1], [lambda: rp_dst(0), lambda: rp_dst(1)], [lambda: rp_dst(2), lambda: rp_dst(3)], [rp_vec]]
    for f in units.pop(0):
        f()
    RQ = opt.get("rq_it", 4)
    for it in range(1, 7):
        l_ready(it)
        if it + NPRE < 7:
            for op in chunk_ops(it + NPRE):
                op()
        if it == NPRE + 1:
            kv_flag()
        if units:
            for f in units.pop(0):
                f()
        if it == RQ:
            rp_dma()
            A.bload("buffer_load_ushort", v(vB1), v(vB1o), s(sB1, 4), s(sB1o))
            A.dsw("ds_write_b32", v(vRb), v(vZero))
            A.dsw("ds_write_b32", v(vRb), v(vZero), offset=128)
    ST("loop")
    if True:
        A.valu("v_and_b32", v(vT0), 31, v(vL))
        A.valu("v_lshrrev_b32", v(vT1), 5, v(vL))
        A.valu("v_lshrrev_b32", v(vT2), 3, v(vT0))
        A.valu("v_mul_u32_u24", v(vT2), XB, v(vT2))
        A.valu("v_and_b32", v(vT3), 7, v(vT0))
        A.valu("v_lshl_add_u32", v(vT2), v(vT3), 7, v(vT2))
        A.valu("v_lshl_add_u32", v(vT2), v(vT1), 4, v(vT2))
        A.valu("v_bfe_u32", v(vT3), v(vT0), 1, 1)
        A.valu("v_xor_b32", v(vT3), s(sPs), v(vT3))
        A.valu("v_lshl_add_u32", v(vT2), v(vT3), 6, v(vT2))
        A.salu("s_add_u32", s(sT0), s(sMx), hex((6 % NSLOT) * SLOT))
        A.valu("v_add_u32", v(vT2), s(sT0), v(vT2))
        A.dsr("ds_read_b128", v(72, 4), v(vT2))
        A.dsr("ds_read_b128", v(76, 4), v(vT2), offset=32)
        A.salu("s_add_u32", s(sT0), s(sKc), 6)
        A.scmp("s_cmp_ge_u32", s(sT0), 7)
        A.salu("s_cselect_b32", s(sT1), 7, 0)
        A.salu("s_sub_u32", s(sT0), s(sT0), s(sT1))
        A.salu("s_lshl_b32", s(sT0), s(sT0), 2)
        A.salu("s_lshl_b32", s(sT1), s(sPs), 1)
        A.salu("s_add_u32", s(sT0), s(sT0), s(sT1))
        A.salu("s_lshl_b32", s(sT1), s(sRb), 2)
        A.salu("s_add_u32", s(sT1), s(sT1), s(sWv))
        A.salu("s_mul_i32", s(sT1), s(sT1), 28)
        A.salu("s_add_u32", s(sT0), s(sT0), s(sT1))
        A.salu("s_lshl_b32", s(sT0), s(sT0), 10)
        A.salu("s_add_u32", s(sT0), s(sT0), hex(WS_XF))
        A.bstore("buffer_store_dwordx4", v(72, 4), v(vL16), s(sWS, 4), s(sT0), mods=STM)
        A.bstore("buffer_store_dwordx4", v(76, 4), v(vL16), s(sWS, 4), s(sT0), offset=1024, mods=STM)
    A.barrier()
    if opt.get("rp_mid", 0):
        rp_part1()
    A.barrier()
    if not opt.get("rp_mid", 0):
        rp_part1()
    rp_part2()
    stamp_flush(A, opt, 0, sWS, 26, vE, vT5, sT0) if False else None
    A.misc("s_endpgm")

    A.label("K1_TEAM_Q")
    A.vm, A.lg, A.smem_pending = list(saved[0]), list(saved[1]), set(saved[2])
    ST("pre0")
    lds_addrs()
    make_srd(A, sWS, 24, WS_END)
    ST("pre1")
    accQ = acc0
    ST("pre2")
    A.barrier()
    ST("b0")
    for op in read_ops(0, 0, 0, (0,)):
        op()
    for it in range(7):
        for p in range(4):
            buf = p & 1
            if p < 3:
                rd = read_ops(it, p + 1, (p + 1) & 1, (0,))
            else:
                if it < 6:
                    A.waitcnt(lg=0)
                    A.barrier()
                    ST(f"b{it + 1}")
                    rd = read_ops(it + 1, 0, 0, (0,))
                else:
                    rd = []
            first = (it == 0 and p == 0)
            xf = v(vXF + 4 * buf, 4)
            wq = v(vWF + 8 * buf, 4)
            A.mfma32(v(accQ, 16), wq, xf, 0 if first else v(accQ, 16))
            pop(rd, 3)
            A.mfma("v_mfma_f32_4x4x4_16b_bf16", v(accSS, 4), v(vXF + 4 * buf, 2), v(vXF + 4 * buf, 2), 0 if first else v(accSS, 4))
            A.mfma("v_mfma_f32_4x4x4_16b_bf16", v(accSS + 4, 4), v(vXF + 4 * buf + 2, 2), v(vXF + 4 * buf + 2, 2), 0 if first else v(accSS + 4, 4))
            if p == 0:
                A.mfma("v_mfma_f32_16x16x32_bf16", v(accCS, 4), v(vSel, 4), wq, 0 if it == 0 else v(accCS, 4))
    ST("loop")
    vSum, vSS, vMean, vRstd = vE + 4, vE + 5, vE + 6, vE + 8
    vTa, vTb = vE + 10, vE + 11
    vXE, vWE, vCS = vE + 12, vE + 16, vE + 20
    colsum_write((0,))
    for i in range(4):
        A.valu("v_add_f32", v(accSS + i), v(accSS + i), v(accSS + 4 + i))
    A.valu("v_and_b32", v(vT1), 3, v(vL))
    A.cmp("v_cmp_eq_u32", "vcc", 1, v(vT1))
    A.cndmask(v(vTa), v(accSS), v(accSS + 1))
    A.cmp("v_cmp_eq_u32", "vcc", 2, v(vT1))
    A.cndmask(v(vTa), v(vTa), v(accSS + 2))
    A.cmp("v_cmp_eq_u32", "vcc", 3, v(vT1))
    A.cndmask(v(vTa), v(vTa), v(accSS + 3))
    sum_halves(A, v(vSS), v(vTa), v(vTb))
    bcast_hi(A, v(vSum), v(accQ + 12), v(vTb))
    A.valu("v_mul_f32", v(vMean), f32(-1.0 / 448), v(vSum))
    A.valu("v_mul_f32", v(vSS), f32(1.0 / 448), v(vSS))
    A.valu("v_fma_f32", v(vSS), "-" + v(vMean), v(vMean), v(vSS))
    A.valu("v_max_f32", v(vSS), 0, v(vSS))
    A.valu("v_add_f32", v(vSS), f32(1e-5), v(vSS))
    A.valu("v_rsq_f32", v(vRstd), v(vSS))
    A.valu("v_cvt_pk_bf16_f32", v(vXE), v(vMean), v(vMean))
    A.valu("v_lshlrev_b32", v(vTb), 16, v(vXE))
    A.valu("v_sub_f32", v(vTb), v(vMean), v(vTb))
    A.valu("v_cvt_pk_bf16_f32", v(vXE + 1), v(vTb), 0)
    A.salu("s_lshl_b32", s(sT0), s(sWv), 7)
    A.salu("s_add_u32", s(sT1), s(sT0), hex(L_RS))
    A.valu("v_lshl_add_u32", v(vT2), v(vT0), 2, s(sT1))
    A.dsw("ds_write_b32", v(vT2), v(vRstd))
    A.salu("s_lshl_b32", s(sT0), s(sWv), 8)
    A.salu("s_add_u32", s(sT1), s(sT0), hex(L_XE))
    A.valu("v_lshl_add_u32", v(vT2), v(vT0), 3, s(sT1))
    A.dsw("ds_write_b64", v(vT2), v(vXE, 2))
    A.valu("v_mov_b32", v(vXE + 2), 0)
    A.valu("v_mov_b32", v(vXE + 3), 0)
    A.valu("v_mov_b32", v(vRstd + 1), v(vRstd))
    A.waitcnt(lg=0)
    A.barrier()
    ST("e1")
    A.dsr("ds_read_b128", v(vCS, 4), v(vT4))
    A.valu("v_lshrrev_b32", v(vT1), 5, v(vL))
    A.cmp("v_cmp_eq_u32", "vcc", 0, v(vT1))
    we_frag(vCS, vWE)
    A.mfma32(v(accQ, 16), v(vWE, 4), v(vXE, 4), v(accQ, 16))
    A.salu("s_lshl_b32", s(sT0), s(sRb), 1)
    A.salu("s_lshr_b32", s(sT1), s(sWv), 1)
    A.salu("s_add_u32", s(sT0), s(sT0), s(sT1))
    A.salu("s_lshl_b32", s(sT0), s(sT0), 6)
    A.salu("s_lshl_b32", s(sT1), s(sHq), 2)
    A.salu("s_add_u32", s(sT0), s(sT0), s(sT1))
    A.salu("s_lshr_b32", s(sT1), s(sHq), 3)
    A.salu("s_xor_b32", s(sT1), s(sT1), s(sWv))
    A.salu("s_and_b32", s(sT1), s(sT1), 1)
    A.salu("s_lshl_b32", s(sT1), s(sT1), 1)
    A.salu("s_add_u32", s(sT0), s(sT0), s(sT1))
    A.salu("s_lshl_b32", s(sT0), s(sT0), 10)
    A.salu("s_add_u32", s(sT0), s(sT0), hex(WS_PQ))
    vPQ = vP + 16
    phi_pack(accQ, lambda i: v(vRstd, 2), vPQ)
    A.bstore("buffer_store_dwordx4", v(vPQ, 4), v(vL16), s(sWS, 4), s(sT0), mods=STM)
    A.bstore("buffer_store_dwordx4", v(vPQ + 4, 4), v(vL16), s(sWS, 4), s(sT0), offset=1024, mods=STM)
    A.barrier()
    ST("e2")
    stamp_flush(A, opt, 0, sWS, 26, vE, vT5, sT0)
    A.misc("s_endpgm")

    A.label("K1_TEAM_KV")
    A.vm, A.lg, A.smem_pending = list(saved[0]), list(saved[1]), set(saved[2])
    if opt.get("prefetch", 1):
        here = "K1_PCREF"
        A.misc(f"s_getpc_b64 {s(sPC, 2)}")
        A.raw(f"{here}:")
        A.misc(f"s_sub_u32 {s(sPC)}, {s(sPC)}, {here}-{KN}")
        A.misc(f"s_subb_u32 {s(sPC + 1)}, {s(sPC + 1)}, 0")
        A.salu("s_lshr_b32", s(sT0), "s2", 3)
        A.salu("s_lshl_b32", s(sT0), s(sT0), 2)
        A.salu("s_add_u32", s(sT0), s(sT0), s(sWv))
        A.salu("s_lshl_b32", s(sT0), s(sT0), 8)
        A.valu("v_and_b32", v(vT0), 1, v(vL))
        A.valu("v_lshl_add_u32", v(vT0), v(vT0), 7, s(sT0))
        A.misc(f"v_min_u32 {v(vT0)}, K2_END-{KN}-4, {v(vT0)}")
        A.gload("global_load_dword", v(47), v(vT0), s(sPC, 2))
    lds_addrs()
    make_srd(A, sWS, 24, WS_END)
    make_srd(A, sDBG, 22, 256)
    accK, accV = acc0, acc1
    ST("pre2")
    A.barrier()
    ST("b0")
    for op in read_ops(0, 0, 0, (1, 2)):
        op()
    for it in range(7):
        for p in range(4):
            buf = p & 1
            if p < 3:
                rd = read_ops(it, p + 1, (p + 1) & 1, (1, 2))
            else:
                if it < 6:
                    A.waitcnt(lg=0)
                    A.barrier()
                    ST(f"b{it + 1}")
                    rd = read_ops(it + 1, 0, 0, (1, 2))
                else:
                    rd = []
            first = (it == 0 and p == 0)
            xf = v(vXF + 4 * buf, 4)
            wk, wv = v(vWF + 8 * buf, 4), v(vWF + 8 * buf + 4, 4)
            A.mfma32(v(accK, 16), xf, wk, 0 if first else v(accK, 16))
            pop(rd, 3)
            A.mfma32(v(accV, 16), xf, wv, 0 if first else v(accV, 16))
            pop(rd, 2)
            if p == 0:
                for k, wf in enumerate((wk, wv)):
                    A.mfma("v_mfma_f32_16x16x32_bf16", v(accCS + 4 * k, 4), v(vSel, 4), wf, 0 if it == 0 else v(accCS + 4 * k, 4))
        if it == 5:
            A.valu("v_mov_b32", v(vT2), 0)
            A.salu("s_lshl_b32", s(sW4), s(sH), 2)
            A.bload("buffer_load_dword", v(vFlag), v(vT2), s(sDBG, 4), s(sW4), mods="sc1")
    ST("loop")
    vXE, vWE, vCS = vE + 4, vE + 8, vE + 16
    colsum_write((1, 2))
    A.valu("v_lshrrev_b32", v(vT1), 5, v(vL))
    A.salu("s_lshl_b32", s(sT0), s(sWv), 7)
    A.salu("s_add_u32", s(sT0), s(sT0), hex(L_RS))
    A.valu("v_lshl_add_u32", v(vT2), v(vT1), 4, s(sT0))
    A.salu("s_lshl_b32", s(sT0), s(sWv), 8)
    A.salu("s_add_u32", s(sT0), s(sT0), hex(L_XE))
    A.valu("v_lshl_add_u32", v(vT3), v(vT0), 3, s(sT0))
    vMk, vOv = vE + 2, vE + 3
    A.cmp("v_cmp_gt_u32", "vcc", 28, v(vT0))
    A.cndmask(v(vMk), 0, -1)
    A.cmp("v_cmp_eq_u32", "vcc", 28, v(vT0))
    A.cndmask(v(vOv), 0, v(vOnes2))
    A.valu("v_mov_b32", v(vXE + 2), 0)
    A.valu("v_mov_b32", v(vXE + 3), 0)
    A.cmp("v_cmp_eq_u32", "vcc", 0, v(vT1))
    A.waitcnt(lg=0)
    A.barrier()
    ST("e1")
    for k in range(2):
        A.dsr("ds_read_b128", v(vCS + 4 * k, 4), v(vT4), offset=16 * (k + 1))
    A.dsr("ds_read_b64", v(vXE, 2), v(vT3))
    for q in range(4):
        A.dsr("ds_read_b128", v(vR + 4 * q, 4), v(vT2), offset=32 * q)
    for k in range(2):
        we_frag(vCS + 4 * k, vWE + 4 * k)
    A.mfma32(v(accK, 16), v(vXE, 4), v(vWE, 4), v(accK, 16))
    A.mfma32(v(accV, 16), v(vXE, 4), v(vWE + 4, 4), v(accV, 16))
    vPK, vVV = vP + 16, vP + 24
    phi_pack(accK, lambda i: v(vR + i, 2), vPK)
    for i in range(8):
        A.valu("v_and_b32", v(vPK + i), v(vMk), v(vPK + i))
    for i in range(0, 16, 2):
        A.valu("v_pk_mul_f32", v(accV + i, 2), v(accV + i, 2), v(vR + i, 2))
    for i in range(0, 16, 2):
        A.valu("v_cvt_pk_bf16_f32", v(vVV + i // 2), v(accV + i), v(accV + i + 1))
        A.valu("v_and_or_b32", v(vVV + i // 2), v(vVV + i // 2), v(vMk), v(vOv))
    accKV = accK
    A.mfma32(v(accKV, 16), v(vPK, 4), v(vVV, 4), 0)
    A.mfma32(v(accKV, 16), v(vPK + 4, 4), v(vVV + 4, 4), v(accKV, 16))
    A.valu("v_add_u32", v(vT2), s(sM4), v(vL16))
    A.salu("s_lshl_b32", s(sT0), s(sWv), 10)
    A.valu("v_lshl_add_u32", v(vT3), v(vL), 2, s(sT0))
    for g in range(4):
        A.dsw("ds_write_b128", v(vT2), v(accKV + 4 * g, 4), offset=1024 * g)
    A.waitcnt(lg=0)
    A.barrier()
    ST("e2")
    vKR = accV
    for src in range(4):
        for u2 in range(2):
            o = (src * 4096 + u2 * 512) // 256
            A.dsr("ds_read2st64_b32", v(vKR + 4 * src + 2 * u2, 2), v(vT3), mods=f" offset0:{o} offset1:{o + 1}")
    A.readfirstlane(s(sT1), v(vFlag))
    A.scmp("s_cmp_lg_u32", s(sT1), 0)
    A.misc("s_cbranch_scc1 K1_FLAG_OK")
    A.salu("s_mov_b32", s(sCnt), 0)
    A.valu("v_mov_b32", v(vT1), 0)
    A.label("K1_POLL")
    A.misc(f"buffer_load_dword {v(vFlag)}, {v(vT1)}, {s(sDBG, 4)}, {s(sW4)} offen sc1")
    A.misc("s_waitcnt vmcnt(0)")
    A.misc(f"v_readfirstlane_b32 {s(sT1)}, {v(vFlag)}")
    A.misc(f"s_add_u32 {s(sCnt)}, {s(sCnt)}, 1")
    A.misc(f"s_cmp_gt_u32 {s(sCnt)}, 0x40000")
    A.misc("s_cbranch_scc1 K1_FLAG_OK")
    A.misc(f"s_cmp_eq_u32 {s(sT1)}, 0")
    A.misc("s_cbranch_scc1 K1_POLL")
    A.label("K1_FLAG_OK")
    for u in range(4):
        A.valu("v_add_f32", v(vKR + u), v(vKR + u), v(vKR + 4 + u))
        A.valu("v_add_f32", v(vKR + 8 + u), v(vKR + 8 + u), v(vKR + 12 + u))
        A.valu("v_add_f32", v(vKR + u), v(vKR + u), v(vKR + 8 + u))
    A.salu("s_lshl_b32", s(sT1), s(sH), 12)
    A.salu("s_add_u32", s(sT1), s(sT1), hex(WS_KV))
    for u in range(4):
        A.bstore("buffer_atomic_add_f32", v(vKR + u), v(vT3), s(sWS, 4), s(sT1), offset=256 * u)
    ST("at")
    stamp_flush(A, opt, 0, sWS, 26, vE, vT5, sT0)
    A.label("K1_DONE")
    A.misc("s_endpgm")
    A.label("K1_END")
    return A.text(), LDS_BYTES


def gen_k2(opt):
    A = Asm()
    KN = "k2_kernel"
    L_W1 = 0
    L_RB = 114688
    L_CNT = L_RB + 1024
    LDS_BYTES = 163840
    sX, sWS, sOUT, sB2 = 28, 32, 36, 40
    sWv, sG, sJ, sRt2, sCt, sT0, sT1, sT2, sT3 = 44, 45, 46, 47, 48, 49, 50, 51, 52
    sWhi, sWlo, sCnt, sMyFl = 53, 54, 55, 56
    sRow, sCol = 58, 59
    sW2p, sH1p, sFl, sPollB = 60, 61, 62, 63
    sW1s, sW1m = 64, 65
    sOne = 66
    sK4 = 68
    sColB, sRowC, sHs = 72, 73, 74
    sH1a, sH1b = 75, 76

    A.raw(f".globl {KN}")
    A.raw(".p2align 8")
    A.raw(f".type {KN},@function")
    A.raw(f"{KN}:")
    A.scmp("s_cmp_ge_u32", "s2", 224)
    A.misc("s_cbranch_scc1 K2_DONE")
    SM = {"bc": 1, "f0": 2, "p0": 3, "c1": 4, "ce": 5, "p2": 6, "dm": 7}
    if opt.get("stamps") == 4:
        SM = {"p0": 1, "ce": 2}
    ST = lambda k: stamp(A, opt, SM.get(k))
    stamp(A, opt, 0)
    A.sload("s_load_dwordx2", s(24, 2), s(0, 2), 80)
    A.sload("s_load_dwordx4", s(16, 4), s(0, 2), 56)

    vL, vL16, vT0, vT1, vT2, vT3, vT4, vT5 = 1, 2, 3, 4, 5, 6, 7, 8
    vHH, vR31, vOne = 9, 10, 11
    vRes = 12
    vB2 = 20
    vL16b, vRs2, vZ, vIdxB = 28, 29, 30, 31
    vKV = 32
    vPQ = 96
    acc = 160
    vTA = 224
    aWO = 0

    A.valu("v_and_b32", v(vL), 63, "v0")
    A.valu("v_lshrrev_b32", v(vT0), 6, "v0")
    A.readfirstlane(s(sWv), v(vT0))
    A.valu("v_lshlrev_b32", v(vL16), 4, v(vL))
    A.valu("v_lshrrev_b32", v(vHH), 5, v(vL))
    A.valu("v_and_b32", v(vR31), 31, v(vL))
    A.salu("s_and_b32", s(sT0), "s2", 7)
    A.salu("s_lshr_b32", s(sT1), "s2", 3)
    A.scmp("s_cmp_ge_u32", s(sT1), 14)
    A.salu("s_cselect_b32", s(sT2), 1, 0)
    A.salu("s_lshl_b32", s(sG), s(sT0), 1)
    A.salu("s_add_u32", s(sG), s(sG), s(sT2))
    A.salu("s_mul_i32", s(sT2), s(sT2), 14)
    A.salu("s_sub_u32", s(sJ), s(sT1), s(sT2))
    A.scmp("s_cmp_ge_u32", s(sJ), 7)
    A.salu("s_cselect_b32", s(sRt2), 1, 0)
    A.salu("s_mul_i32", s(sT2), s(sRt2), 7)
    A.salu("s_sub_u32", s(sCt), s(sJ), s(sT2))
    A.salu("s_lshr_b32", s(sWhi), s(sWv), 1)
    A.salu("s_and_b32", s(sWlo), s(sWv), 1)
    A.salu("s_movk_i32", s(sK4), 4096)
    A.salu("s_movk_i32", s(sK4 + 1), 8192)
    A.salu("s_movk_i32", s(sK4 + 2), 12288)
    vKVo, vPQo, vWOo = vT1, vT2, vT3
    A.salu("s_lshl_b32", s(sT0), s(sWv), 14)
    A.valu("v_add_u32", v(vKVo), s(sT0), v(vL16))
    A.salu("s_lshl_b32", s(sT1), s(sG), 1)
    A.salu("s_add_u32", s(sT1), s(sT1), s(sRt2))
    A.salu("s_lshl_b32", s(sT2), s(sT1), 16)
    A.salu("s_add_u32", s(sT2), s(sT2), s(sT0))
    A.salu("s_add_u32", s(sT2), s(sT2), hex(WS_PQ))
    A.valu("v_add_u32", v(vPQo), s(sT2), v(vL16))
    A.salu("s_lshl_b32", s(sT2), s(sCt), 16)
    A.salu("s_add_u32", s(sT2), s(sT2), s(sT0))
    A.salu("s_add_u32", s(sT2), s(sT2), hex(WS_WO))
    A.valu("v_add_u32", v(vWOo), s(sT2), v(vL16))
    make_srd(A, sWS, 24, WS_END)

    def b_load_ops(hd):
        so = 0 if hd == 0 else s(sK4 + hd - 1)
        ops = []
        for g in range(4):
            ops.append(lambda g=g: A.bload("buffer_load_dwordx4", v(vKV + 16 * hd + 4 * g, 4), v(vKVo), s(sWS, 4), so, offset=1024 * g))
        for i in range(4):
            ops.append(lambda i=i: A.bload("buffer_load_dwordx4", v(vPQ + 16 * hd + 4 * i, 4), v(vPQo), s(sWS, 4), so, offset=1024 * i))
        for i in range(4):
            ops.append(lambda i=i: A.bload("buffer_load_dwordx4", a(aWO + 16 * hd + 4 * i, 4), v(vWOo), s(sWS, 4), so, offset=1024 * i))
        return ops

    bq = b_load_ops(0) + b_load_ops(1) + b_load_ops(2) + b_load_ops(3)
    pop(bq, opt.get("b_pre", 16))

    A.salu("s_lshl_b32", s(sRow), s(sT1), 1)
    A.salu("s_add_u32", s(sRow), s(sRow), s(sWhi))
    A.salu("s_lshl_b32", s(sCol), s(sCt), 1)
    A.salu("s_add_u32", s(sCol), s(sCol), s(sWlo))
    A.salu("s_lshl_b32", s(sT2), s(sT1), 2)
    A.salu("s_add_u32", s(sT2), s(sT2), s(sWv))
    A.salu("s_mul_i32", s(sT2), s(sT2), 56 * 1024)
    A.salu("s_add_u32", s(sH1p), s(sT2), hex(WS_H1))
    A.salu("s_lshl_b32", s(sT2), s(sCt), 2)
    A.salu("s_add_u32", s(sT2), s(sT2), s(sWv))
    A.salu("s_mul_i32", s(sT2), s(sT2), 56 * 1024)
    A.salu("s_add_u32", s(sW2p), s(sT2), hex(WS_W2))
    make_srd(A, sOUT, 18, 2048 * 896)
    make_srd(A, sB2, 16, 896)
    A.salu("s_mov_b32", s(sOne), "1.0")
    A.salu("s_mov_b32", s(sOne + 1), "1.0")
    A.salu("s_lshl_b32", s(sT0), s(sRow), 5)
    A.valu("v_add_u32", v(vT0), s(sT0), v(vR31))
    A.salu("s_movk_i32", s(sT1), 896)
    A.valu("v_mul_lo_u32", v(vT0), v(vT0), s(sT1))
    A.valu("v_lshl_add_u32", v(vT5), v(vHH), 3, v(vT0))
    A.salu("s_lshl_b32", s(sColB), s(sCol), 6)
    A.valu("v_lshlrev_b32", v(vT4), 3, v(vHH))
    sXf = 77
    A.salu("s_mul_i32", s(sT0), s(sRow), 28)
    A.salu("s_lshl_b32", s(sT1), s(sCol), 1)
    A.salu("s_add_u32", s(sT0), s(sT0), s(sT1))
    A.salu("s_lshl_b32", s(sT0), s(sT0), 10)
    A.salu("s_add_u32", s(sXf), s(sT0), hex(WS_XF))
    A.salu("s_add_u32", s(78), s(sT0), hex(WS_H))
    for f in range(2):
        bq.append(lambda f=f: A.bload("buffer_load_dwordx4", v(vRes + 4 * f, 4), v(vL16), s(sWS, 4), s(sXf), offset=1024 * f))
    aID = 240
    A.valu("v_lshlrev_b32", v(vT0), 3, v(vHH))
    A.valu("v_sub_u32", v(vT0), v(vR31), v(vT0))
    for f in range(2):
        for dw in range(4):
            A.cmp("v_cmp_eq_u32", "vcc", 16 * f + 2 * dw, v(vT0))
            A.cndmask(v(vRs2), 0, "0x3f80" if False else v(vOne), "vcc") if False else None
            A.valu("v_mov_b32", v(vL16b), "0x3f80")
            A.cndmask(v(vRs2), 0, v(vL16b))
            A.cmp("v_cmp_eq_u32", "vcc", 16 * f + 2 * dw + 1, v(vT0))
            A.valu("v_mov_b32", v(vL16b), "0x3f800000")
            A.cndmask(v(vRs2), v(vRs2), v(vL16b))
            A.valu("v_accvgpr_write_b32", a(aID + 4 * f + dw), v(vRs2))
    for q in range(4):
        bq.append(lambda q=q: A.bload("buffer_load_dwordx2", v(vB2 + 2 * q, 2), v(vT4), s(sB2, 4), s(sColB), offset=16 * q))
    A.salu("s_lshl_b32", s(sT0), s(sJ), 2)
    A.salu("s_add_u32", s(sT0), s(sT0), s(sWv))
    A.salu("s_mul_i32", s(sT0), s(sT0), 29 * 1024)
    A.salu("s_add_u32", s(sW1s), s(sT0), hex(WS_W1))
    A.salu("s_mul_i32", s(sW1m), s(sWv), 28672)
    pf = []
    for n in range(7):
        for i in range(4):
            def op(n=n, i=i):
                if i == 0:
                    A.salu("s_add_u32", "m0", s(sW1m), hex(L_W1 + n * 4096))
                A.dma(v(vL16), s(sWS, 4), s(sW1s), offset=1024 * i)
                if i == 3:
                    A.salu("s_add_u32", s(sW1s), s(sW1s), 4096)
            pf.append(op)
    aW1E = 224
    for c4 in range(4):
        def op(c4=c4):
            A.salu("s_mul_i32", s(sT3), s(sJ), 4 * 29 * 1024)
            A.salu("s_add_u32", s(sT3), s(sT3), hex(WS_W1 + 28 * 1024 + c4 * 29 * 1024))
            A.bload("buffer_load_dwordx4", a(aW1E + 4 * c4, 4), v(vL16), s(sWS, 4), s(sT3))
        pf.append(op)
    NW1 = len(pf)
    wq = []
    for k in range(56):
        def op(k=k):
            A.bload("buffer_load_dwordx4", a(4 * k, 4), v(vL16), s(sWS, 4), s(sW2p), offset=(k % 4) * 1024)
            if k % 4 == 3:
                A.salu("s_add_u32", s(sW2p), s(sW2p), 4096)
        wq.append(op)
    A.salu("s_lshl_b32", s(sFl), s(sG), 11)
    A.salu("s_add_u32", s(sFl), s(sFl), hex(WS_FLAGS))
    A.salu("s_lshl_b32", s(sT0), s(sJ), 7)
    A.salu("s_add_u32", s(sMyFl), s(sT0), s(sFl))
    A.valu("v_mov_b32", v(vOne), 1)
    A.valu("v_mov_b32", v(vZ), 0)
    A.valu("v_min_u32", v(vT0), 6, v(vL))
    A.salu("s_mul_i32", s(sT0), s(sWhi), 7)
    A.valu("v_add_u32", v(vT0), s(sT0), v(vT0))
    A.valu("v_lshlrev_b32", v(vIdxB), 7, v(vT0))
    A.valu("v_add_u32", v(vL16b), hex(57344), v(vL16))

    units = [(hd, aa) for hd in range(4) for aa in range(2)]
    bcount = [0]
    NW1A = [opt.get("w1a", 12)]
    vN0, vN1, vN2 = vT0, vRs2, vL16b

    def bpop():
        bcount[0] += 1
        if bq:
            pop(bq, opt.get("bsp", 2))
        elif NW1A[0] > 0 and bcount[0] % opt.get("w1a_every", 2) == 0:
            pop(pf)
            NW1A[0] -= 1

    def b_stage1(u):
        hd, aa = units[u]
        if aa == 0:
            base = vKV + 16 * hd
            for i in range(8):
                A.valu("v_cvt_pk_bf16_f32", v(base + i), v(base + 2 * i), v(base + 2 * i + 1))
        t = vTA + 16 * (u & 1)
        A.mfma32(v(t, 16), v(vKV + 16 * hd, 4), v(vPQ + 16 * hd + 8 * aa, 4), 0)
        bpop()
        A.mfma32(v(t, 16), v(vKV + 16 * hd + 4, 4), v(vPQ + 16 * hd + 8 * aa + 4, 4), v(t, 16))
        bpop()

    def b_norm(u):
        t = vTA + 16 * (u & 1)
        A.valu("v_add_f32", v(vN0), f32(1e-6), v(t + 12))
        A.valu("v_rcp_f32", v(vN0), v(vN0))
        bcast_hi(A, v(vN1), v(vN0), v(vN2))
        for i in range(16):
            A.valu("v_mul_f32", v(t + i), v(vN1), v(t + i))
        for i in range(8):
            A.valu("v_cvt_pk_bf16_f32", v(t + i), v(t + 2 * i), v(t + 2 * i + 1))

    def b_stage2(u):
        hd, aa = units[u]
        t = vTA + 16 * (u & 1)
        for f in range(2):
            for bb in range(2):
                blk = acc + 16 * (2 * aa + bb)
                first = (hd == 0 and f == 0)
                A.mfma32(v(blk, 16), a(aWO + 16 * hd + 8 * f + 4 * bb, 4), v(t + 4 * f, 4), 0 if first else v(blk, 16))
                bpop()

    b_stage1(0)
    for u in range(8):
        if u + 1 < 8:
            b_stage1(u + 1)
        b_norm(u)
        b_stage2(u)
    assert not bq
    for f in range(2):
        A.mfma32(v(acc, 16), a(aID + 4 * f, 4), v(vRes + 4 * f, 4), v(acc, 16))
    ST("bc")
    A.valu("v_add_u32", v(vL16b), hex(57344), v(vL16))

    def reduce_tiles(rbuf, base, side=None, nside=0):
        for r in range(1, 4):
            A.salu("s_xor_b32", s(sT0), s(sWv), r)
            A.salu("s_mul_i32", s(sT0), s(sT0), 3 * 4096)
            A.salu("s_add_u32", s(sT0), s(sT0), hex(base + (r - 1) * 4096))
            A.valu("v_add_u32", v(vT0), s(sT0), v(vL16))
            for g in range(4):
                A.dsw("ds_write_b128", v(vT0), v(acc + 16 * r + 4 * g, 4), offset=1024 * g)
        A.salu("s_mul_i32", s(sT0), s(sWv), 3 * 4096)
        if base:
            A.salu("s_add_u32", s(sT0), s(sT0), hex(base))
        A.valu("v_add_u32", v(vT0), s(sT0), v(vL16))
        if side is not None:
            pop(side, nside)
        A.waitcnt(lg=0)
        A.barrier()
        for r in range(3):
            for g in range(4):
                A.dsr("ds_read_b128", v(rbuf + 16 * r + 4 * g, 4), v(vT0), offset=4096 * r + 1024 * g)
        for r in range(3):
            for i in range(0, 16, 2):
                A.valu("v_pk_add_f32", v(acc + i, 2), v(acc + i, 2), v(rbuf + 16 * r + i, 2))

    reduce_tiles(vKV, L_RB, pf, opt.get("w1r", 6))
    for i in range(8):
        A.valu("v_cvt_pk_bf16_f32", v(vRes + i), v(acc + 2 * i), v(acc + 2 * i + 1))
    A.bstore("buffer_store_dwordx4", v(vRes, 4), v(vL16), s(sWS, 4), s(78), mods="sc1")
    A.bstore("buffer_store_dwordx4", v(vRes + 4, 4), v(vL16), s(sWS, 4), s(78), offset=1024, mods="sc1")
    vS1, vS2 = vTA, vTA + 1
    A.valu("v_mov_b32", v(vT2), "0x3f803f80")
    A.valu("v_dot2_f32_bf16", v(vT0), v(vRes), v(vT2), 0)
    A.valu("v_dot2_f32_bf16", v(vT1), v(vRes), v(vRes), 0)
    for i in range(1, 8):
        A.valu("v_dot2_f32_bf16", v(vT0), v(vRes + i), v(vT2), v(vT0))
        A.valu("v_dot2_f32_bf16", v(vT1), v(vRes + i), v(vRes + i), v(vT1))
    sum_halves(A, v(vS1), v(vT0), v(vT3))
    sum_halves(A, v(vS2), v(vT1), v(vT3))
    A.cmp("v_cmp_eq_u32", "vcc", 0, v(vHH))
    A.valu("v_lshlrev_b32", v(vT0), 3, v(vR31))
    A.valu("v_mov_b32", v(vT1), hex(OOB))
    A.cndmask(v(vT0), v(vT1), v(vT0))
    A.salu("s_mul_i32", s(sT0), s(sRow), 14)
    A.salu("s_add_u32", s(sT0), s(sT0), s(sCol))
    A.salu("s_lshl_b32", s(sT0), s(sT0), 8)
    A.salu("s_add_u32", s(sT0), s(sT0), hex(WS_HST))
    A.bstore("buffer_store_dwordx2", v(vS1, 2), v(vT0), s(sWS, 4), s(sT0), mods="sc1")

    vIdxD, vP = 254, 255

    def post_flag(idx):
        A.salu("s_add_u32", s(sT0), s(sMyFl), idx * 32768)
        if idx == 0:
            A.scmp("s_cmp_eq_u32", s(sWv), 0)
        else:
            A.valu("v_mov_b32", v(vT0), hex(L_CNT + 4 * idx))
            A.salu("s_mov_b64", "exec", 1)
            A.dsr("ds_add_rtn_u32", v(vT1), v(vT0) + ", " + v(vOne), mods="")
            A.salu("s_mov_b64", "exec", -1)
            A.readfirstlane(s(sT1), v(vT1))
            A.scmp("s_cmp_eq_u32", s(sT1), 3)
        A.salu("s_cselect_b32", s(sT0), s(sT0), hex(OOB))
        A.bstore("buffer_store_dword", v(vOne), v(vZ), s(sWS, 4), s(sT0), mods="sc1")

    def poll_issue(idx, vidx):
        A.salu("s_add_u32", s(sPollB), s(sFl), idx * 32768)
        A.bload("buffer_load_dword", v(vP), v(vidx), s(sWS, 4), s(sPollB), mods="sc1")

    def poll_check(tag, vidx):
        A.cmp("v_cmp_ne_u32", "vcc", 1, v(vP))
        A.salu("s_mov_b32", s(sCnt), 0)
        A.misc("s_nop 1")
        A.misc(f"s_cbranch_vccz K2_OK{tag}")
        A.label(f"K2_POLL{tag}")
        A.misc(f"buffer_load_dword {v(vP)}, {v(vidx)}, {s(sWS, 4)}, {s(sPollB)} offen sc1")
        A.misc("s_waitcnt vmcnt(0)")
        A.misc(f"v_cmp_ne_u32 vcc, 1, {v(vP)}")
        A.misc(f"s_add_u32 {s(sCnt)}, {s(sCnt)}, 1")
        A.misc(f"s_cmp_gt_u32 {s(sCnt)}, 0x40000")
        A.misc(f"s_cbranch_scc1 K2_OK{tag}")
        A.misc("s_nop 1")
        A.misc(f"s_cbranch_vccnz K2_POLL{tag}")
        A.label(f"K2_OK{tag}")

    A.salu("s_lshl_b32", s(sRowC), s(sG), 2)
    A.salu("s_add_u32", s(sRowC), s(sRowC), s(sWv))
    A.salu("s_mul_i32", s(sHs), s(sRowC), 28 * 1024)
    A.salu("s_add_u32", s(sHs), s(sHs), hex(WS_H))
    A.salu("s_mul_i32", s(sT2), s(sRowC), 14 * 256)
    A.salu("s_add_u32", s(sT2), s(sT2), hex(WS_HST))
    A.valu("v_mul_u32_u24", v(vT4), 7 * 256, v(vHH))
    A.valu("v_lshl_add_u32", v(vT4), v(vR31), 3, v(vT4))
    A.valu("v_add_u32", v(vT4), s(sT2), v(vT4))
    A.salu("s_lshr_b32", s(sT0), s(sRowC), 1)
    A.salu("s_mul_i32", s(sT0), s(sT0), 4 * 56)
    A.salu("s_lshl_b32", s(sT1), s(sJ), 1)
    A.salu("s_add_u32", s(sT0), s(sT0), s(sT1))
    A.salu("s_add_u32", s(sT1), s(sT0), s(sWlo))
    A.salu("s_lshl_b32", s(sT1), s(sT1), 10)
    A.salu("s_add_u32", s(sH1a), s(sT1), hex(WS_H1))
    A.salu("s_xor_b32", s(sT1), s(sWlo), 1)
    A.salu("s_add_u32", s(sT1), s(sT0), s(sT1))
    A.salu("s_lshl_b32", s(sT1), s(sT1), 10)
    A.salu("s_add_u32", s(sH1b), s(sT1), hex(WS_H1))

    A.waitcnt(vm=0, lg=0)
    A.barrier()
    post_flag(0)
    A.valu("v_mov_b32", v(vT0), hex(L_CNT))
    A.dsw("ds_write_b32", v(vT0), v(vZ), offset=4)
    A.dsw("ds_write_b32", v(vT0), v(vZ), offset=8)
    ST("f0")
    pop(pf, 100)
    pop(wq, opt.get("w2_g1", 8))
    poll_issue(0, vIdxB)
    poll_check("A", vIdxB)
    ST("p0")

    vH = 32
    vWF = 144
    accC = 160
    vST = 224
    vHE = 240
    vC1, vC2 = 238, 244
    vG = 246
    hq = []
    for ks in range(28):
        def op(ks=ks):
            A.bload("buffer_load_dwordx4", v(vH + 4 * ks, 4), v(vL16), s(sWS, 4), s(sHs), offset=(ks % 4) * 1024, mods="sc1")
            if ks % 4 == 3:
                A.salu("s_add_u32", s(sHs), s(sHs), 4096)
        hq.append(op)
    for u in range(7):
        hq.append(lambda u=u: A.bload("buffer_load_dwordx2", v(vST + 2 * u, 2), v(vT4), s(sWS, 4), 0, offset=256 * u, mods="sc1"))
    pop(hq, opt.get("h_pre", 14))
    A.waitcnt(lg=0)
    A.barrier()

    def w1_read(c4, ks, buf):
        off = (c4 * 28 + ks) * 1024
        if off >= 57344:
            A.dsr("ds_read_b128", v(vWF + 4 * buf, 4), v(vL16b), offset=off - 57344)
        else:
            A.dsr("ds_read_b128", v(vWF + 4 * buf, 4), v(vL16), offset=off)

    def c_stats():
        for u in range(1, 7):
            A.valu("v_add_f32", v(vST), v(vST), v(vST + 2 * u))
            A.valu("v_add_f32", v(vST + 1), v(vST + 1), v(vST + 2 * u + 1))
        sum_halves(A, v(vST + 2), v(vST), v(vT0))
        sum_halves(A, v(vST + 3), v(vST + 1), v(vT0))
        m, var, sg, rs = vST + 4, vST + 5, vST + 6, vST + 7
        A.valu("v_mul_f32", v(m), f32(-1.0 / 448), v(vST + 2))
        A.valu("v_mul_f32", v(var), f32(1.0 / 448), v(vST + 3))
        A.valu("v_fma_f32", v(var), "-" + v(m), v(m), v(var))
        A.valu("v_max_f32", v(var), 0, v(var))
        A.valu("v_add_f32", v(var), f32(1e-5), v(var))
        A.valu("v_rsq_f32", v(rs), v(var))
        A.valu("v_mul_f32", v(sg), v(var), v(rs))
        A.valu("v_cvt_pk_bf16_f32", v(vHE), v(m), v(m))
        A.valu("v_lshlrev_b32", v(vT0), 16, v(vHE))
        A.valu("v_sub_f32", v(vT0), v(m), v(vT0))
        A.valu("v_cvt_pk_bf16_f32", v(vHE + 1), v(vT0), v(sg))
        A.valu("v_and_b32", v(vT0), "0xffff0000", v(vHE + 1))
        A.valu("v_sub_f32", v(vT0), v(sg), v(vT0))
        A.valu("v_cvt_pk_bf16_f32", v(vHE + 2), v(vT0), 0)
        A.valu("v_mov_b32", v(vHE + 3), 0)
        A.valu("v_mul_f32", v(vC1), f32(GC1), v(rs))
        A.valu("v_mul_f32", v(vT0), v(rs), v(rs))
        A.valu("v_mul_f32", v(vT0), v(vT0), v(rs))
        A.valu("v_mul_f32", v(vC2), f32(GC2), v(vT0))
        A.salu("s_lshl_b32", s(sT0), s(sWv), 7)
        A.salu("s_add_u32", s(sT0), s(sT0), hex(L_RB))
        A.valu("v_lshl_add_u32", v(vT0), v(vR31), 2, s(sT0))
        A.dsw("ds_write_b32", v(vT0), v(rs))

    st_tok = {}

    def h1_store(c4, f):
        ab = accC + 16 * c4
        wd = 2 * (c4 & 1) + f
        A.salu("s_add_u32", s(sT3), s(sH1b if (c4 & 1) else sH1a), (wd * 56 + 28 * (c4 >> 1)) * 1024)
        st_tok[(c4, f)] = A.bstore("buffer_store_dwordx4", v(ab + 4 * f, 4), v(vL16), s(sWS, 4), s(sT3), mods="sc1")

    def quad_ops(c4, q, packed):
        ab = accC + 16 * c4 + 4 * q
        t = vG + 4 * (q & 1)
        ops = []
        if packed:
            for k in (0, 2):
                ops.append((5, lambda k=k: A.valu("v_pk_mul_f32", v(t + k, 2), v(ab + k, 2), v(ab + k, 2))))
            for k in (0, 2):
                ops.append((5, lambda k=k: A.valu("v_pk_fma_f32", v(t + k, 2), v(t + k, 2), v(vC2, 2), v(vC1, 2), mods="op_sel_hi:[1,0,0]")))
            for k in (0, 2):
                ops.append((5, lambda k=k: A.valu("v_pk_mul_f32", v(t + k, 2), v(t + k, 2), v(ab + k, 2))))
            for k in range(4):
                ops.append((8, lambda k=k: A.valu("v_exp_f32", v(t + k), v(t + k))))
            for k in (0, 2):
                ops.append((5, lambda k=k: A.valu("v_pk_add_f32", v(t + k, 2), v(t + k, 2), s(sOne, 2))))
            for k in range(4):
                ops.append((8, lambda k=k: A.valu("v_rcp_f32", v(t + k), v(t + k))))
            for k in (0, 2):
                ops.append((5, lambda k=k: A.valu("v_pk_mul_f32", v(t + k, 2), v(t + k, 2), v(ab + k, 2))))
        else:
            for k in range(4):
                ops.append((4, lambda k=k: A.valu("v_mul_f32", v(t + k), v(ab + k), v(ab + k))))
            for k in range(4):
                ops.append((5, lambda k=k: A.valu("v_fma_f32", v(t + k), v(t + k), v(vC2), v(vC1))))
            for k in range(4):
                ops.append((4, lambda k=k: A.valu("v_mul_f32", v(t + k), v(t + k), v(ab + k))))
            for k in range(4):
                ops.append((8, lambda k=k: A.valu("v_exp_f32", v(t + k), v(t + k))))
            for k in range(4):
                ops.append((4, lambda k=k: A.valu("v_add_f32", v(t + k), "1.0", v(t + k))))
            for k in range(4):
                ops.append((8, lambda k=k: A.valu("v_rcp_f32", v(t + k), v(t + k))))
            for k in range(4):
                ops.append((4, lambda k=k: A.valu("v_mul_f32", v(t + k), v(t + k), v(ab + k))))
        d = accC + 16 * c4 + 2 * q
        for k in (0, 2):
            ops.append((5, lambda k=k: A.valu("v_cvt_pk_bf16_f32", v(d + k // 2), v(t + k), v(t + k + 1))))
        if q & 1:
            ops.append((10, lambda: h1_store(c4, q >> 1)))
        return ops

    NP1 = opt.get("c_p1", 3)
    seq = [(ks, c4) for ks in range(28) for c4 in range(NP1)]
    for c4 in range(NP1, 4):
        seq += [(ks, c4) for ks in range(28)]
    n_p1 = 28 * NP1
    quads = []
    cur = []
    est = [0, 0]
    W2GAP = opt.get("w2_pace", 90)

    def pace():
        if wq and est[0] - est[1] >= W2GAP:
            pop(wq)
            est[1] = est[0]
            est[0] += 25

    def fill(budget, packed):
        used = 0
        while used < budget:
            if not cur:
                if not quads:
                    break
                c4, q = quads.pop(0)
                cur.extend(quad_ops(c4, q, packed))
            c, fn = cur.pop(0)
            fn()
            used += c
        return used

    NB = 4
    ready_at = {}
    for n in range(3):
        w1_read(seq[n][1], seq[n][0], n % NB)
    for n, (ks, c4) in enumerate(seq):
        if n + 3 < len(seq):
            w1_read(seq[n + 3][1], seq[n + 3][0], (n + 3) % NB)
        ab = accC + 16 * c4
        A.mfma32(v(ab, 16), v(vWF + 4 * (n % NB), 4), v(vH + 4 * ks, 4), 0 if ks == 0 else v(ab, 16))
        if n < n_p1 and c4 == 0:
            pop(hq, 1 if len(hq) > 7 else 2)
        if n == n_p1 - NP1:
            assert not hq
            c_stats()
        if ks == 27:
            A.mfma32(v(ab, 16), a(aW1E + 4 * c4, 4), v(vHE, 4), v(ab, 16))
            ready_at[max(n + 2, n_p1 + 1)] = ready_at.get(max(n + 2, n_p1 + 1), []) + [c4]
        if n == n_p1 + 1:
            ST("c1")
        for c in ready_at.pop(n, []):
            quads.extend((c, q) for q in range(4))
        used = fill(opt.get("c_budget", 20), False) if n > n_p1 else 0
        if n >= opt.get("w2_start", 60):
            est[0] += max(32, 13 + used)
            pace()
    for k in sorted(ready_at):
        for c in ready_at[k]:
            quads.extend((c, q) for q in range(4))
    A.valu("v_min_u32", v(vIdxD), 13, v(vL))
    A.valu("v_lshlrev_b32", v(vIdxD), 7, v(vIdxD))
    f1_posted, f1_polled = False, False
    while quads or cur:
        used = fill(40, True)
        est[0] += used
        pace()
        if not f1_posted and (1, 1) in st_tok and len(quads) <= opt.get("f1_at", 7):
            A.wait_vm_token(st_tok[(1, 1)])
            post_flag(1)
            f1_posted = True
        if f1_posted and not f1_polled and len(quads) <= opt.get("f1_poll_at", 1):
            poll_issue(1, vIdxD)
            f1_polled = True
    assert f1_posted and f1_polled
    ST("ce")

    vD = 32
    WIN = 14
    DPRE = opt.get("d_pre", 6)
    dq = []
    for k in range(56):
        def op(k=k):
            if k == 28:
                poll_check("C", vIdxD)
                ST("p2")
            A.bload("buffer_load_dwordx4", v(vD + 4 * (k % 28), 4), v(vL16), s(sWS, 4), s(sH1p), offset=(k % 4) * 1024, mods="sc1")
            if k % 4 == 3:
                A.salu("s_add_u32", s(sH1p), s(sH1p), 4096)
            if k == opt.get("f2_poll_k", 23):
                poll_issue(2, vIdxD)
        dq.append(op)
    poll_check("B", vIdxD)
    pop(dq, 2 * opt.get("d_pre0", 3))
    A.wait_vm_token(st_tok[(3, 1)])
    A.waitcnt(lg=0)
    post_flag(2)
    pop(dq, 2 * (DPRE - opt.get("d_pre0", 3)))
    pop(wq, 100)
    for pos in range(28):
        for aa in range(2):
            for bb in range(2):
                blk = acc + 16 * (2 * aa + bb)
                A.mfma32(v(blk, 16), a(8 * pos + 4 * bb, 4), v(vD + 8 * (pos % WIN) + 4 * aa, 4), 0 if pos == 0 else v(blk, 16))
            pop(dq)
    A.salu("s_lshl_b32", s(sT0), s(sRt2), 1)
    A.salu("s_add_u32", s(sT0), s(sT0), s(sWhi))
    A.salu("s_lshl_b32", s(sT0), s(sT0), 7)
    A.salu("s_add_u32", s(sT0), s(sT0), hex(L_RB))
    A.valu("v_lshl_add_u32", v(vT0), v(vR31), 2, s(sT0))
    A.dsr("ds_read_b32", v(vRs2), v(vT0))
    ST("dm")
    reduce_tiles(32, 0)
    for i in range(8):
        A.valu("v_lshlrev_b32", v(vT0), 16, v(vRes + i))
        A.valu("v_and_b32", v(vT1), "0xffff0000", v(vRes + i))
        A.valu("v_lshlrev_b32", v(vT2), 16, v(vB2 + i))
        A.valu("v_and_b32", v(vT3), "0xffff0000", v(vB2 + i))
        A.valu("v_fma_f32", v(vT2), v(acc + 2 * i), v(vRs2), v(vT2))
        A.valu("v_fma_f32", v(vT3), v(acc + 2 * i + 1), v(vRs2), v(vT3))
        A.valu("v_add_f32", v(vT0), v(vT0), v(vT2))
        A.valu("v_add_f32", v(vT1), v(vT1), v(vT3))
        A.valu("v_cvt_pk_bf16_f32", v(acc + 16 + i), v(vT0), v(vT1))
    o = acc + 16
    for qp in range(2):
        A.permlane32_swap(v(o + 4 * qp), v(o + 4 * qp + 2))
        A.permlane32_swap(v(o + 4 * qp + 1), v(o + 4 * qp + 3))
    A.valu("v_lshl_add_u32", v(vT0), v(vHH), 3, v(vT5))
    for qp in range(2):
        A.bstore("buffer_store_dwordx4", v(o + 4 * qp, 4), v(vT0), s(sOUT, 4), s(sColB), offset=32 * qp, mods={0: "", 1: "sc1", 2: "nt"}[opt.get("ostm", 0)])
    stamp_flush(A, opt, 1, sWS, sWv, 32, vT4, sT0)
    A.label("K2_DONE")
    A.misc("s_endpgm")
    A.label("K2_END")
    return A.text(), LDS_BYTES


HEADER = """; Kernarg layout for this problem (88 bytes, ptrs only, base s[0:1]):
"""


def kd(name, nv, acc_off, ns=102):
    return f""".amdhsa_kernel {name}
  .amdhsa_next_free_vgpr {nv}
  .amdhsa_next_free_sgpr {ns}
  .amdhsa_accum_offset {acc_off}
  .amdhsa_group_segment_fixed_size 0
  .amdhsa_kernarg_size 88
  .amdhsa_user_sgpr_count 2
  .amdhsa_user_sgpr_kernarg_segment_ptr 1
  .amdhsa_system_sgpr_workgroup_id_x 1
  .amdhsa_float_denorm_mode_32 3
.end_amdhsa_kernel
"""


def build(opt):
    k1, l1 = gen_k1(opt)
    k2, l2 = gen_k2(opt)
    out = HEADER
    for _ in range(1 + opt.get("k1x", 0)):
        out += f"; @launch kernel=k1_kernel grid=(256,1,1) block=(768,1,1) lds={l1}\n"
    out += f"; @launch kernel=k2_kernel grid=(224,1,1) block=(256,1,1) lds={l2}\n"
    out += '.amdgcn_target "amdgcn-amd-amdhsa--gfx950"\n.text\n'
    out += k1 + k2
    out += '.section .rodata,"a"\n.p2align 6\n'
    out += kd("k1_kernel", 168, 168)
    out += ".p2align 6\n"
    out += kd("k2_kernel", 512, 256)
    return out


if __name__ == "__main__":
    opt = {}
    outp = f"cdna_kernels/{NAME}.s"
    for arg in sys.argv[1:]:
        if arg.startswith("-o"):
            outp = arg[2:]
        else:
            k, val = arg.split("=")
            opt[k] = int(val)
    open(outp, "w").write(build(opt))
    print("wrote", outp)
```

```python
import math
import struct
import sys
import os

sys.path.insert(0, os.path.dirname(os.path.abspath(__file__)))
from asmlib import Asm, v, a, s

NAME = "sequential_preLN__linear_attn_block__dense_activation_gelu__prompt"

WS_KV = 0
WS_FLAGS = 0x10000
WS_HST = 0x28000
WS_WO = 0x60000
WS_W1 = 0xD0000
WS_W2 = WS_W1 + 56 * 29 * 1024
WS_PQ = WS_W2 + 14 * 112 * 1024
WS_H = WS_PQ + 64 * 32 * 1024
WS_H1 = WS_H + 64 * 28 * 1024
WS_XF = WS_H1 + 64 * 112 * 1024
WS_STAMP = WS_XF + 64 * 28 * 1024
WS_END = WS_STAMP + 2 * 256 * 8 * 16 * 8
OOB = 0x7F000000

LOG2E = 1.4426950408889634
GC1 = -2.0 * math.sqrt(2.0 / math.pi) * LOG2E
GC2 = GC1 * 0.044715


def f32(x):
    return "0x%08x" % struct.unpack("<I", struct.pack("<f", x))[0]


def make_srd(A, d, b, size):
    A.salu("s_mov_b32", s(d), s(b))
    A.salu("s_and_b32", s(d + 1), s(b + 1), "0xffff")
    A.salu("s_mov_b32", s(d + 2), size if isinstance(size, str) else hex(size))
    A.salu("s_mov_b32", s(d + 3), "0x00020000")


def bcast_hi(A, dst, src, tmp):
    A.valu("v_mov_b32", tmp, src)
    A.valu("v_mov_b32", dst, src)
    A.permlane32_swap(tmp, dst)


def sum_halves(A, dst, src, tmp):
    A.valu("v_mov_b32", tmp, src)
    A.valu("v_mov_b32", dst, src)
    A.permlane32_swap(tmp, dst)
    A.valu("v_add_f32", dst, dst, tmp)


def stamp(A, opt, idx):
    if not opt.get("stamps") or idx is None:
        return
    assert 0 <= idx < 8
    A.misc(f"s_memrealtime s[{84 + 2 * idx}:{85 + 2 * idx}]")


def stamp_flush(A, opt, kern, sWS, sWv, vt, va, stmp):
    if not opt.get("stamps"):
        return
    A.waitcnt(vm=0, lg=0)
    A.misc("s_memrealtime s[100:101]")
    A.misc("s_waitcnt lgkmcnt(0)")
    A.salu("s_lshl_b32", s(stmp), "s2", 3)
    A.salu("s_add_u32", s(stmp), s(stmp), s(sWv))
    A.salu("s_lshl_b32", s(stmp), s(stmp), 7)
    A.salu("s_add_u32", s(stmp), s(stmp), hex(WS_STAMP + kern * 256 * 8 * 128))
    A.valu("v_mov_b32", v(va), 0)
    for idx in range(9):
        A.valu("v_mov_b32", v(vt + 2 * idx), f"s{84 + 2 * idx}")
        A.valu("v_mov_b32", v(vt + 2 * idx + 1), f"s{85 + 2 * idx}")
        A.bstore("buffer_store_dwordx2", v(vt + 2 * idx, 2), v(va), s(sWS, 4), s(stmp), offset=8 * idx)


def pop(q, n=1):
    for _ in range(n):
        if q:
            q.pop(0)()


def gen_k1(opt):
    A = Asm()
    KN = "k1_kernel"
    STM = {0: "", 1: "sc1", 2: "nt", 3: "sc0 sc1"}[opt.get("stm", 1)]
    XB = 1040
    XW = 4 * XB
    WOFF = 4 * XW
    SLOT = WOFF + 12288
    NSLOT = 4
    L_RP = NSLOT * SLOT
    L_SCR = L_RP + 16384
    L_CS2 = L_SCR
    L_RS = L_SCR + 1536
    L_XE = L_SCR + 2048
    L_CS1 = L_SCR + 3072
    LDS_BYTES = L_CS1 + 1024

    sX, sW, sWS, sDBG, sRP, sB1 = 28, 32, 36, 40, 44, 48
    sWv, sRb, sH, sKc, sT0, sT1, sT2, sT3 = 52, 53, 54, 55, 56, 57, 58, 59
    sXo, sWo = 60, 61
    sRS0, sRSTEP, sCls, sRRS, sP0, sKh, sCt = 62, 63, 64, 65, 66, 67, 68
    sHq = 69
    sPC = 70
    sMx, sMw = 72, 73
    sC_eps6 = 74
    sC_l2e = 76
    sU, sUp, sI, sW4 = 78, 79, 80, 81
    sCnt, sM4 = 82, 83
    sWall = 27

    A.raw(f".globl {KN}")
    A.raw(".p2align 8")
    A.raw(f".type {KN},@function")
    A.raw(f"{KN}:")
    A.scmp("s_cmp_ge_u32", "s2", 256)
    A.misc("s_cbranch_scc1 K1_DONE")
    SM = {"b0": 1, "b2": 2, "b6": 3, "loop": 4, "e1": 5, "e2": 6, "at": 7}
    if opt.get("stamps") == 4:
        SM = {"b0": 1, "loop": 2}
    if opt.get("stamps") == 5:
        SM = {"pre0": 1, "pre1": 2, "pre2": 3, "b0": 4, "b1": 5}
    ST = lambda k: stamp(A, opt, SM.get(k))
    stamp(A, opt, 0)
    A.sload("s_load_dwordx16", s(4, 16), s(0, 2), 0)
    A.sload("s_load_dwordx4", s(20, 4), s(0, 2), 64)
    A.sload("s_load_dwordx2", s(24, 2), s(0, 2), 80)

    vL, vT0, vT1, vT2, vT3, vT4, vT5 = 1, 2, 3, 4, 5, 6, 7
    vXo = 8
    vWo = 12
    vRPo = 15
    vXa = 16
    vWa = 24
    vPad = 32
    vOnes2 = 34
    vSel = 36
    vRPa = 40
    vL16 = 41
    vB1 = 42
    vFlag = 43
    vZero = 44
    vXF = 48
    vWF = 56
    acc0, acc1 = 72, 88
    accSS = 88
    accCS = 104
    accRC = 48
    vRF = 52
    vR = 48
    vE = 112
    vP = 136

    A.valu("v_and_b32", v(vL), 63, "v0")
    A.valu("v_lshrrev_b32", v(vT0), 6, "v0")
    A.readfirstlane(s(sWall), v(vT0))
    A.salu("s_and_b32", s(sWv), s(sWall), 3)
    A.salu("s_sub_u32", s(26), s(sWall), 4)
    A.salu("s_and_b32", s(sT0), "s2", 7)
    A.salu("s_lshr_b32", s(sT1), "s2", 3)
    A.salu("s_lshl_b32", s(sT2), s(sT0), 1)
    A.salu("s_and_b32", s(sT3), s(sT1), 1)
    A.salu("s_add_u32", s(sRb), s(sT2), s(sT3))
    A.salu("s_lshr_b32", s(sH), s(sT1), 1)
    A.salu("s_lshr_b32", s(sKc), s(sH), 1)
    A.salu("s_mul_i32", s(sKc), s(sKc), opt.get("ca", 1))
    A.salu("s_mul_i32", s(sT3), s(sT3), opt.get("cb", 3))
    A.salu("s_add_u32", s(sKc), s(sKc), s(sT3))
    A.salu("s_mul_i32", s(sT0), s(sKc), 37)
    A.salu("s_lshr_b32", s(sT0), s(sT0), 8)
    A.salu("s_mul_i32", s(sT0), s(sT0), 7)
    A.salu("s_sub_u32", s(sKc), s(sKc), s(sT0))
    A.salu("s_xor_b32", s(sHq), s(sH), 1)
    A.salu("s_mul_i32", s(sMx), s(sWv), XW)
    A.salu("s_mul_i32", s(sMw), s(sWv), 3072)
    A.salu("s_add_u32", s(sMw), s(sMw), WOFF)
    A.salu("s_lshl_b32", s(sM4), s(sWv), 12)
    A.valu("v_lshlrev_b32", v(vL16), 4, v(vL))

    def lds_addrs():
        A.valu("v_and_b32", v(vT0), 31, v(vL))
        A.valu("v_lshrrev_b32", v(vT1), 5, v(vL))
        A.valu("v_lshrrev_b32", v(vT2), 3, v(vT0))
        A.valu("v_mul_u32_u24", v(vT2), XB, v(vT2))
        A.valu("v_and_b32", v(vT3), 7, v(vT0))
        A.valu("v_lshl_add_u32", v(vT2), v(vT3), 7, v(vT2))
        A.valu("v_lshl_add_u32", v(vT2), v(vT1), 4, v(vT2))
        A.valu("v_add_u32", v(vT2), s(sMx), v(vT2))
        A.valu("v_bfe_u32", v(vT3), v(vT0), 1, 1)
        for p in range(4):
            A.salu("s_add_u32", s(sT0), s(sWv), p)
            A.salu("s_bfe_u32", s(sT1), s(sT0), "0x10001")
            A.salu("s_and_b32", s(sT0), s(sT0), 1)
            A.salu("s_lshl_b32", s(sT0), s(sT0), 5)
            A.valu("v_xor_b32", v(vT4), s(sT1), v(vT3))
            A.valu("v_lshl_add_u32", v(vT4), v(vT4), 6, v(vT2))
            A.valu("v_add_u32", v(vXa + p), s(sT0), v(vT4))
            A.valu("v_add_u32", v(vXa + 4 + p), hex(2 * SLOT), v(vXa + p))
        A.valu("v_bfe_u32", v(vT2), v(vL), 2, 2)
        A.valu("v_lshl_add_u32", v(vT2), v(vT1), 3, v(vT2))
        A.valu("v_mul_u32_u24", v(vT2), 192, v(vT2))
        A.valu("v_bfe_u32", v(vT3), v(vL), 4, 1)
        A.valu("v_lshl_add_u32", v(vT2), v(vT3), 5, v(vT2))
        A.valu("v_and_b32", v(vT4), 3, v(vL))
        A.valu("v_lshl_add_u32", v(vT2), v(vT4), 3, v(vT2))
        for p in range(4):
            A.salu("s_add_u32", s(sT0), s(sWv), p)
            A.salu("s_and_b32", s(sT0), s(sT0), 3)
            A.salu("s_mul_i32", s(sT0), s(sT0), 3072)
            A.salu("s_add_u32", s(sT0), s(sT0), WOFF)
            A.valu("v_add_u32", v(vWa + p), s(sT0), v(vT2))
            A.valu("v_add_u32", v(vWa + 4 + p), hex(2 * SLOT), v(vWa + p))
        A.valu("v_mov_b32", v(vOnes2), "0x3f803f80")
        A.valu("v_mov_b32", v(vOnes2 + 1), "0x3f803f80")
        A.valu("v_and_b32", v(vT2), 1, v(vL))
        A.cmp("v_cmp_eq_u32", "vcc", v(vT2), v(vT3))
        for i in range(4):
            A.cndmask(v(vSel + i), 0, v(vOnes2))
        A.salu("s_mov_b32", s(sC_eps6), f32(1e-6))
        A.salu("s_mov_b32", s(sC_eps6 + 1), f32(1e-6))
        A.salu("s_mov_b32", s(sC_l2e), f32(LOG2E))
        A.salu("s_mov_b32", s(sC_l2e + 1), f32(LOG2E))

    def read_ops(it, p, buf, segs):
        st = (it % NSLOT) // 2
        off = ((it % NSLOT) % 2) * SLOT
        ops = [lambda: A.dsr("ds_read_b128", v(vXF + 4 * buf, 4), v(vXa + 4 * st + p), offset=off)]
        for k, seg in enumerate(segs):
            ops.append(lambda k=k, seg=seg: A.dsr("ds_read_b64_tr_b16", v(vWF + 8 * buf + 4 * k, 2), v(vWa + 4 * st + p), offset=off + seg * 64))
            ops.append(lambda k=k, seg=seg: A.dsr("ds_read_b64_tr_b16", v(vWF + 8 * buf + 4 * k + 2, 2), v(vWa + 4 * st + p), offset=off + seg * 64 + 768))
        return ops

    def colsum_write(segs):
        A.valu("v_bfe_u32", v(vT3), v(vL), 4, 1)
        A.cmp("v_cmp_eq_u32", "vcc", 1, v(vT3))
        A.valu("v_and_b32", v(vT0), 31, v(vL))
        A.valu("v_mul_u32_u24", v(vT4), 48, v(vT0))
        A.salu("s_lshl_b32", s(sT0), s(sWv), 2)
        A.salu("s_add_u32", s(sT0), s(sT0), hex(L_CS2))
        A.valu("v_add_u32", v(vT2), s(sT0), v(vT4))
        A.valu("v_add_u32", v(vT4), hex(L_CS2), v(vT4))
        for k, seg in enumerate(segs):
            A.cndmask(v(vE + k), v(accCS + 4 * k), v(accCS + 4 * k + 1))
            A.dsw("ds_write_b32", v(vT2), v(vE + k), offset=16 * seg)

    def we_frag(c, dst):
        A.valu("v_add_f32", v(c), v(c), v(c + 1))
        A.valu("v_add_f32", v(c + 2), v(c + 2), v(c + 3))
        A.valu("v_add_f32", v(c), v(c), v(c + 2))
        A.cndmask(v(c), 0, v(c))
        A.valu("v_cvt_pk_bf16_f32", v(dst + 1), v(c), 0)
        A.valu("v_lshlrev_b32", v(c + 2), 16, v(dst + 1))
        A.valu("v_sub_f32", v(c + 2), v(c), v(c + 2))
        A.valu("v_cvt_pk_bf16_f32", v(dst), v(c), v(c + 2))
        A.valu("v_mov_b32", v(dst + 2), 0)
        A.valu("v_mov_b32", v(dst + 3), 0)

    def phi_pack(acc, rs_pair, dstbase):
        for i in range(0, 16, 2):
            A.valu("v_pk_fma_f32", v(acc + i, 2), v(acc + i, 2), rs_pair(i), s(sC_eps6, 2))
        for i in range(0, 16, 2):
            A.valu("v_pk_mul_f32", v(vP + i, 2), v(acc + i, 2), s(sC_l2e, 2))
        for i in range(16):
            A.valu("v_exp_f32", v(vP + i), v(vP + i), mods="clamp")
            A.valu("v_max_f32", v(acc + i), s(sC_eps6), v(acc + i))
        for i in range(0, 16, 2):
            A.valu("v_pk_add_f32", v(acc + i, 2), v(acc + i, 2), v(vP + i, 2))
        for i in range(0, 16, 2):
            A.valu("v_cvt_pk_bf16_f32", v(dstbase + i // 2), v(acc + i), v(acc + i + 1))

    accRC, vRF = 48, 52
    sDst, sSrc, sExt, sB1o, sKhm, sPs, sG1 = 4, 8, 9, 10, 11, 12, 20
    vRa, vRb, vB1o, vExo = vE, vE + 1, vE + 2, vE + 3

    def rp_u0():
        make_srd(A, sB1, 14, 1792 * 2)
        A.salu("s_lshl_b32", s(sUp), s(sRb), 4)
        A.salu("s_add_u32", s(sUp), s(sUp), s(sH))
        A.salu("s_lshr_b32", s(sUp), s(sUp), 1)
        A.salu("s_mov_b32", s(sCls), 2)
        A.scmp("s_cmp_lt_u32", s(sUp), 112)
        A.salu("s_cselect_b32", s(sCls), 1, s(sCls))
        A.scmp("s_cmp_lt_u32", s(sUp), 56)
        A.salu("s_cselect_b32", s(sCls), 0, s(sCls))
        A.salu("s_mov_b32", s(sRP), "s8")
        A.salu("s_mov_b32", s(sRP + 1), "s9")
        A.salu("s_mov_b32", s(sRP + 2), hex(448 * 896))
        A.salu("s_movk_i32", s(sRSTEP), 64)
        A.salu("s_movk_i32", s(sRRS), 896)
        A.scmp("s_cmp_eq_u32", s(sCls), 1)
        A.salu("s_cselect_b32", s(sRP), "s16", s(sRP))
        A.salu("s_cselect_b32", s(sRP + 1), "s17", s(sRP + 1))
        A.salu("s_cselect_b32", s(sRP + 2), hex(1792 * 896), s(sRP + 2))
        A.salu("s_cselect_b32", s(sRSTEP), hex(16 * 896), s(sRSTEP))
        A.scmp("s_cmp_eq_u32", s(sCls), 0)
        A.salu("s_cselect_b32", s(sRP), "s12", s(sRP))
        A.salu("s_cselect_b32", s(sRP + 1), "s13", s(sRP + 1))
        A.salu("s_cselect_b32", s(sRP + 2), hex(448 * 3584), s(sRP + 2))
        A.salu("s_cselect_b32", s(sRSTEP), hex(16 * 3584), s(sRSTEP))
        A.salu("s_cselect_b32", s(sRRS), hex(3584), s(sRRS))
        A.salu("s_and_b32", s(sRP + 1), s(sRP + 1), "0xffff")
        A.salu("s_mov_b32", s(sRP + 3), "0x00020000")
        A.salu("s_and_b32", s(sPs), s(sH), 1)

    def rp_u1():
        A.salu("s_sub_u32", s(sCt), s(sUp), 112)
        A.salu("s_mov_b32", s(sKh), s(sPs))
        A.salu("s_mul_i32", s(sRS0), s(sCt), 28 * 896)
        A.salu("s_mul_i32", s(sT0), s(sPs), 16 * 896)
        A.salu("s_add_u32", s(sRS0), s(sRS0), s(sT0))
        A.salu("s_sub_u32", s(sT0), s(sUp), 56)
        A.salu("s_lshr_b32", s(sT1), s(sT0), 3)
        A.salu("s_lshl_b32", s(sT1), s(sT1), 1)
        A.salu("s_add_u32", s(sT1), s(sT1), s(sPs))
        A.salu("s_and_b32", s(sT0), s(sT0), 7)
        A.salu("s_mul_i32", s(sT2), s(sT0), 224 * 896)
        A.salu("s_lshl_b32", s(sT3), s(sT1), 6)
        A.salu("s_add_u32", s(sT2), s(sT2), s(sT3))
        A.scmp("s_cmp_eq_u32", s(sCls), 1)
        A.salu("s_cselect_b32", s(sCt), s(sT1), s(sCt))
        A.salu("s_cselect_b32", s(sKh), s(sT0), s(sKh))
        A.salu("s_cselect_b32", s(sRS0), s(sT2), s(sRS0))
        A.salu("s_lshr_b32", s(sT1), s(sUp), 1)
        A.salu("s_lshl_b32", s(sT1), s(sT1), 1)
        A.salu("s_add_u32", s(sT1), s(sT1), s(sPs))
        A.salu("s_and_b32", s(sT0), s(sUp), 1)
        A.salu("s_mul_i32", s(sT2), s(sT0), 224 * 3584)
        A.salu("s_lshl_b32", s(sT3), s(sT1), 6)
        A.salu("s_add_u32", s(sT2), s(sT2), s(sT3))
        A.scmp("s_cmp_eq_u32", s(sCls), 0)
        A.salu("s_cselect_b32", s(sCt), s(sT1), s(sCt))
        A.salu("s_cselect_b32", s(sKh), s(sT0), s(sKh))
        A.salu("s_cselect_b32", s(sRS0), s(sT2), s(sRS0))
        A.salu("s_mul_i32", s(sT0), s(sWv), s(sRSTEP))
        A.salu("s_add_u32", s(sSrc), s(sT0), s(sRS0))
        A.salu("s_lshl_b32", s(sB1o), s(sCt), 6)
        A.salu("s_mul_i32", s(sT0), s(sCt), 29 * 1024)
        A.salu("s_add_u32", s(sT0), s(sT0), hex(WS_W1 + 28 * 1024))
        A.scmp("s_cmp_eq_u32", s(sCls), 0)
        A.salu("s_cselect_b32", s(sExt), s(sT0), hex(OOB))
        A.salu("s_lshl_b32", s(sRSTEP), s(sRSTEP), 2)

    def rp_dst(n):
        A.salu("s_add_u32", s(sI), s(sWv), 4 * n)
        A.salu("s_lshr_b32", s(sT0), s(sI), 1)
        A.salu("s_lshl_b32", s(sT0), s(sT0), 6)
        A.salu("s_lshl_b32", s(sT1), s(sCt), 2)
        A.salu("s_add_u32", s(sT0), s(sT0), s(sT1))
        A.salu("s_lshl_b32", s(sT1), s(sKh), 1)
        A.salu("s_add_u32", s(sT0), s(sT0), s(sT1))
        A.salu("s_lshr_b32", s(sT1), s(sCt), 2)
        A.salu("s_xor_b32", s(sT1), s(sT1), s(sI))
        A.salu("s_and_b32", s(sT1), s(sT1), 1)
        A.salu("s_add_u32", s(sT0), s(sT0), s(sT1))
        A.salu("s_add_u32", s(sT0), s(sT0), WS_WO >> 10)
        A.salu("s_mul_i32", s(sP0), s(sKh), 14)
        A.salu("s_add_u32", s(sP0), s(sP0), s(sI))
        A.salu("s_lshr_b32", s(sT1), s(sCt), 1)
        A.salu("s_lshl_b32", s(sT1), s(sT1), 2)
        A.salu("s_and_b32", s(sT2), s(sP0), 3)
        A.salu("s_add_u32", s(sT1), s(sT1), s(sT2))
        A.salu("s_mul_i32", s(sT1), s(sT1), 28)
        A.salu("s_lshr_b32", s(sT2), s(sP0), 3)
        A.salu("s_add_u32", s(sT1), s(sT1), s(sT2))
        A.salu("s_bfe_u32", s(sT2), s(sP0), "0x10002")
        A.salu("s_mul_i32", s(sT2), s(sT2), 14)
        A.salu("s_add_u32", s(sT1), s(sT1), s(sT2))
        A.salu("s_lshl_b32", s(sT1), s(sT1), 1)
        A.salu("s_xor_b32", s(sT2), s(sCt), s(sP0))
        A.salu("s_and_b32", s(sT2), s(sT2), 1)
        A.salu("s_add_u32", s(sT1), s(sT1), s(sT2))
        A.salu("s_add_u32", s(sT1), s(sT1), WS_W2 >> 10)
        A.scmp("s_cmp_eq_u32", s(sCls), 1)
        A.salu("s_cselect_b32", s(sT0), s(sT1), s(sT0))
        A.salu("s_mul_i32", s(sT1), s(sCt), 29)
        A.salu("s_add_u32", s(sT1), s(sT1), s(sP0))
        A.salu("s_add_u32", s(sT1), s(sT1), WS_W1 >> 10)
        A.scmp("s_cmp_eq_u32", s(sCls), 0)
        A.salu("s_cselect_b32", s(sT0), s(sT1), s(sT0))
        A.salu("s_lshl_b32", s(sDst + n), s(sT0), 10)
        if n == 3:
            A.scmp("s_cmp_lt_u32", s(sWv), 2)
            A.salu("s_cselect_b32", s(sDst + n), s(sDst + n), hex(OOB))

    def rp_vec():
        A.valu("v_lshrrev_b32", v(vT1), 5, v(vL))
        A.valu("v_bfe_u32", v(vT3), v(vL), 4, 1)
        A.valu("v_and_b32", v(vT4), 3, v(vL))
        A.valu("v_bfe_u32", v(vT2), v(vL), 2, 2)
        A.valu("v_lshl_add_u32", v(vT2), v(vT1), 2, v(vT2))
        A.valu("v_lshlrev_b32", v(vT2), 6, v(vT2))
        A.valu("v_lshl_add_u32", v(vT2), v(vT3), 5, v(vT2))
        A.valu("v_lshl_add_u32", v(vT2), v(vT4), 3, v(vT2))
        A.salu("s_add_u32", s(sT0), s(sM4), hex(L_RP))
        A.valu("v_add_u32", v(vRPa), s(sT0), v(vT2))
        A.cmp("v_cmp_eq_u32", s(sG1, 2), 1, v(vT3))
        A.valu("v_lshrrev_b32", v(vT0), 2, v(vL))
        A.valu("v_mul_lo_u32", v(vT3), v(vT0), s(sRRS))
        A.valu("v_lshl_add_u32", v(vT3), v(vT4), 4, v(vT3))
        A.salu("s_lshl_b32", s(sT0), s(sCls), 1)
        A.salu("s_add_u32", s(sT0), s(sT0), s(sPs))
        A.scmp("s_cmp_eq_u32", s(sT0), 5)
        A.salu("s_cselect_b32", s(sT3), 12, 64)
        A.cmp("v_cmp_gt_u32", "vcc", s(sT3), v(vT0))
        A.valu("v_mov_b32", v(vT2), hex(OOB))
        A.cndmask(v(vRPo), v(vT2), v(vT3))
        A.valu("v_and_b32", v(vT0), 31, v(vL))
        A.valu("v_lshlrev_b32", v(vB1o), 1, v(vT0))
        A.valu("v_lshlrev_b32", v(vT4), 2, v(vT0))
        A.valu("v_add_u32", v(vRb), hex(L_CS1), v(vT4))
        A.valu("v_mov_b32", v(vRa), hex(L_CS1 + 128))
        A.cmp("v_cmp_eq_u32", "vcc", s(sKh), v(vT1))
        A.cndmask(v(vExo), v(vT2), v(vL16))
        A.scmp("s_cmp_eq_u32", s(sKh), 0)
        A.salu("s_cselect_b32", s(sKhm), -1, 0)

    rp_tok = []

    def rp_dma():
        for i in range(4):
            if i == 3:
                A.scmp("s_cmp_lt_u32", s(sWv), 2)
                A.salu("s_cselect_b32", s(sSrc), s(sSrc), hex(OOB))
            A.salu("s_add_u32", "m0", s(sM4), hex(L_RP + i * 1024))
            rp_tok.append(A.dma(v(vRPo), s(sRP, 4), s(sSrc)))
            if i < 3:
                A.salu("s_add_u32", s(sSrc), s(sSrc), s(sRSTEP))

    def rp_part1(wait=True):
        if wait:
            A.wait_vm_token(rp_tok[3])
        for i in range(4):
            A.dsr("ds_read_b64_tr_b16", v(vRF + 4 * i, 2), v(vRPa), offset=i * 1024)
            A.dsr("ds_read_b64_tr_b16", v(vRF + 4 * i + 2, 2), v(vRPa), offset=i * 1024 + 512)
        for i in range(4):
            A.bstore("buffer_store_dwordx4", v(vRF + 4 * i, 4), v(vL16), s(sWS, 4), s(sDst + i), mods=STM)
            A.mfma("v_mfma_f32_16x16x32_bf16", v(accRC, 4), v(vSel, 4), v(vRF + 4 * i, 4), 0 if i == 0 else v(accRC, 4))
        A.cndmask(v(vT2), v(accRC), v(accRC + 1), s(sG1, 2))
        A.salu("s_mov_b32", "exec_hi", 0)
        A.dsw("ds_add_f32", v(vRb), v(vT2))
        A.valu("v_mov_b32", v(vT3), 1)
        A.waitcnt(lg=0)
        A.salu("s_mov_b64", "exec", 1)
        A.dsr("ds_add_rtn_u32", v(vT1), v(vRa) + ", " + v(vT3), mods="")
        A.salu("s_mov_b64", "exec", -1)
        A.readfirstlane(s(sT1), v(vT1))
        A.scmp("s_cmp_eq_u32", s(sT1), 3)
        A.salu("s_cselect_b32", s(sExt), s(sExt), hex(OOB))

    def rp_part2():
        e = vE + 4
        A.dsr("ds_read_b32", v(e), v(vRb))
        A.valu("v_lshlrev_b32", v(e + 7), 16, v(vB1))
        A.valu("v_and_b32", v(e + 7), s(sKhm), v(e + 7))
        A.valu("v_cvt_pk_bf16_f32", v(e + 1), v(e), v(e))
        A.valu("v_lshlrev_b32", v(e + 1), 16, v(e + 1))
        A.valu("v_sub_f32", v(e + 1), v(e), v(e + 1))
        A.valu("v_cvt_pk_bf16_f32", v(e + 4), v(e), v(e + 1))
        A.valu("v_cvt_pk_bf16_f32", v(e + 5), v(e), v(e + 7))
        A.valu("v_lshrrev_b32", v(e + 6), 16, v(e + 7))
        A.valu("v_mov_b32", v(e + 7), 0)
        A.bstore("buffer_store_dwordx4", v(e + 4, 4), v(vExo), s(sWS, 4), s(sExt), mods=STM)

    A.scmp("s_cmp_ge_u32", s(sWall), 8)
    A.misc("s_cbranch_scc1 K1_TEAM_Q")
    A.scmp("s_cmp_ge_u32", s(sWall), 4)
    A.misc("s_cbranch_scc1 K1_TEAM_KV")
    saved = (list(A.vm), list(A.lg), set(A.smem_pending))
    if opt.get("lprio", 1):
        A.misc("s_setprio 3")

    A.salu("s_lshl_b32", s(sT0), s(sRb), 7)
    A.salu("s_lshl_b32", s(sT1), s(sWv), 5)
    A.salu("s_add_u32", s(sT0), s(sT0), s(sT1))
    A.salu("s_movk_i32", s(sT1), 896)
    A.valu("v_lshrrev_b32", v(vT0), 3, v(vL))
    A.valu("v_bfe_u32", v(vT1), v(vL), 2, 1)
    A.valu("v_bfe_u32", v(vT3), v(vL), 4, 1)
    A.valu("v_xor_b32", v(vT1), v(vT1), v(vT3))
    A.valu("v_and_b32", v(vT3), 3, v(vL))
    A.valu("v_lshl_add_u32", v(vT3), v(vT1), 2, v(vT3))
    A.valu("v_add_u32", v(vT2), s(sT0), v(vT0))
    A.valu("v_mul_lo_u32", v(vT2), v(vT2), s(sT1))
    A.valu("v_lshl_add_u32", v(vXo), v(vT3), 4, v(vT2))
    for b in range(1, 4):
        A.valu("v_add_u32", v(vXo + b), (8 * 896 - XB) * b, v(vXo))
    A.salu("s_mul_i32", s(sT2), s(sWv), 16 * 2688)
    A.salu("s_mul_i32", s(sT0), s(sH), 56)
    A.salu("s_add_u32", s(sT0), s(sT0), s(sT2))
    A.salu("s_mul_i32", s(sT3), s(sHq), 56)
    A.salu("s_add_u32", s(sT3), s(sT3), s(sT2))
    A.valu("v_mov_b32", v(vT0), s(sT0))
    A.valu("v_mov_b32", v(vT1), s(sT3))
    A.salu("s_movk_i32", s(sT2), 2688)
    for j in range(3):
        A.valu("v_add_u32", v(vT2), 64 * j, v(vL))
        A.valu("v_mul_u32_u24", v(vT3), 43691, v(vT2))
        A.valu("v_lshrrev_b32", v(vT3), 19, v(vT3))
        A.valu("v_mul_u32_u24", v(vT4), 12, v(vT3))
        A.valu("v_sub_u32", v(vT2), v(vT2), v(vT4))
        A.valu("v_mul_lo_u32", v(vT3), v(vT3), s(sT2))
        A.cmp("v_cmp_gt_u32", "vcc", 4, v(vT2))
        A.valu("v_lshrrev_b32", v(vT4), 2, v(vT2))
        A.valu("v_mul_lo_u32", v(vT4), v(vT4), s(sT1))
        A.valu("v_and_b32", v(vT2), 3, v(vT2))
        A.valu("v_lshl_add_u32", v(vT3), v(vT2), 4, v(vT3))
        A.cndmask(v(vT2), v(vT0), v(vT1))
        A.valu("v_add3_u32", v(vT3), v(vT3), v(vT4), v(vT2))
        if j:
            A.valu("v_subrev_u32", v(vWo + j), 1024 * j, v(vT3))
        else:
            A.valu("v_mov_b32", v(vWo + j), v(vT3))
    make_srd(A, sX, 4, 2048 * 896)
    make_srd(A, sW, 6, 448 * 2688)
    make_srd(A, sWS, 24, WS_END)
    chunk_tok = {}

    def chunk_ops(it):
        slot = (it % NSLOT) * SLOT
        ops = []

        def x_op(b):
            if b == 0:
                A.salu("s_lshl_b32", s(sXo), s(sKc), 7)
                A.salu("s_mul_i32", s(sWo), s(sKc), 64 * 2688)
                if opt.get("abl") in (2, 4):
                    A.salu("s_mov_b32", s(sXo), hex(OOB))
                if opt.get("abl") in (2, 3):
                    A.salu("s_mov_b32", s(sWo), hex(OOB))
                A.salu("s_add_u32", "m0", s(sMx), hex(slot))
            A.dma(v(vXo + b), s(sX, 4), s(sXo), offset=XB * b)

        def w_op(j):
            if j == 0:
                A.salu("s_add_u32", "m0", s(sMw), hex(slot))
            tk = A.dma(v(vWo + j), s(sW, 4), s(sWo), offset=1024 * j)
            if j == 2:
                chunk_tok[it] = tk
                A.salu("s_add_u32", s(sKc), s(sKc), 1)
                A.scmp("s_cmp_eq_u32", s(sKc), 7)
                A.salu("s_cselect_b32", s(sKc), 0, s(sKc))
        for b in range(4):
            ops.append(lambda b=b: x_op(b))
        for j in range(3):
            ops.append(lambda j=j: w_op(j))
        return ops

    NPRE = opt.get("k1_pre", 2)
    for it in range(NPRE):
        for op in chunk_ops(it):
            op()
    A.valu("v_and_b32", v(vT2), 15, v(vL))
    A.valu("v_mul_u32_u24", v(vT2), 192, v(vT2))
    A.salu("s_add_u32", s(sT0), s(sMw), 56)
    A.valu("v_add_u32", v(vPad), s(sT0), v(vT2))
    A.valu("v_add_u32", v(vPad + 1), hex(2 * SLOT), v(vPad))
    A.valu("v_mov_b32", v(vOnes2), "0x3f803f80")
    A.valu("v_mov_b32", v(vOnes2 + 1), "0x3f803f80")
    A.valu("v_lshrrev_b32", v(vT1), 5, v(vL))
    A.valu("v_bfe_u32", v(vT3), v(vL), 4, 1)
    A.valu("v_and_b32", v(vT4), 3, v(vL))
    A.valu("v_and_b32", v(vT2), 1, v(vL))
    A.cmp("v_cmp_eq_u32", "vcc", v(vT2), v(vT3))
    for i in range(4):
        A.cndmask(v(vSel + i), 0, v(vOnes2))

    def l_ready(it):
        A.wait_vm_token(chunk_tok[it])
        st = (it % NSLOT) // 2
        A.dsw("ds_write_b64", v(vPad + st), v(vOnes2, 2), offset=((it % NSLOT) % 2) * SLOT)
        A.waitcnt(lg=0)
        A.barrier()
        ST(f"b{it}")

    l_ready(0)
    for op in chunk_ops(NPRE):
        op()
    make_srd(A, sDBG, 22, 256)
    for i in range(4):
        A.valu("v_mov_b32", v(vZero + i), 0)
    A.salu("s_lshl_b32", s(sT0), s(sRb), 4)
    A.salu("s_add_u32", s(sT0), s(sT0), s(sH))
    A.salu("s_lshl_b32", s(sT1), s(sT0), 12)
    A.scmp("s_cmp_lt_u32", s(sT0), 40)
    A.salu("s_cselect_b32", s(sT1), s(sT1), hex(OOB))
    A.valu("v_and_b32", v(vT0), 255, "v0")
    A.valu("v_lshlrev_b32", v(vT0), 4, v(vT0))
    A.bstore("buffer_store_dwordx4", v(vZero, 4), v(vT0), s(sWS, 4), s(sT1), mods="sc1")

    def kv_flag():
        A.salu("s_lshl_b32", s(sT0), s(sH), 2)
        A.scmp("s_cmp_eq_u32", s(sRb), 0)
        A.salu("s_cselect_b32", s(sT0), s(sT0), hex(OOB))
        A.scmp("s_cmp_eq_u32", s(sWv), 0)
        A.salu("s_cselect_b32", s(sT0), s(sT0), hex(OOB))
        A.valu("v_mov_b32", v(vT0), 1)
        A.valu("v_mov_b32", v(vT2), 0)
        A.bstore("buffer_store_dword", v(vT0), v(vT2), s(sDBG, 4), s(sT0), mods="sc1")

    units = [[rp_u0, rp_u1], [lambda: rp_dst(0), lambda: rp_dst(1)], [lambda: rp_dst(2), lambda: rp_dst(3)], [rp_vec]]
    for f in units.pop(0):
        f()
    RQ = opt.get("rq_it", 4)
    for it in range(1, 7):
        l_ready(it)
        if it + NPRE < 7:
            for op in chunk_ops(it + NPRE):
                op()
        if it == NPRE + 1:
            kv_flag()
        if units:
            for f in units.pop(0):
                f()
        if it == RQ:
            rp_dma()
            A.bload("buffer_load_ushort", v(vB1), v(vB1o), s(sB1, 4), s(sB1o))
            A.dsw("ds_write_b32", v(vRb), v(vZero))
            A.dsw("ds_write_b32", v(vRb), v(vZero), offset=128)
    ST("loop")
    if True:
        A.valu("v_and_b32", v(vT0), 31, v(vL))
        A.valu("v_lshrrev_b32", v(vT1), 5, v(vL))
        A.valu("v_lshrrev_b32", v(vT2), 3, v(vT0))
        A.valu("v_mul_u32_u24", v(vT2), XB, v(vT2))
        A.valu("v_and_b32", v(vT3), 7, v(vT0))
        A.valu("v_lshl_add_u32", v(vT2), v(vT3), 7, v(vT2))
        A.valu("v_lshl_add_u32", v(vT2), v(vT1), 4, v(vT2))
        A.valu("v_bfe_u32", v(vT3), v(vT0), 1, 1)
        A.valu("v_xor_b32", v(vT3), s(sPs), v(vT3))
        A.valu("v_lshl_add_u32", v(vT2), v(vT3), 6, v(vT2))
        A.salu("s_add_u32", s(sT0), s(sMx), hex((6 % NSLOT) * SLOT))
        A.valu("v_add_u32", v(vT2), s(sT0), v(vT2))
        A.dsr("ds_read_b128", v(72, 4), v(vT2))
        A.dsr("ds_read_b128", v(76, 4), v(vT2), offset=32)
        A.salu("s_add_u32", s(sT0), s(sKc), 6)
        A.scmp("s_cmp_ge_u32", s(sT0), 7)
        A.salu("s_cselect_b32", s(sT1), 7, 0)
        A.salu("s_sub_u32", s(sT0), s(sT0), s(sT1))
        A.salu("s_lshl_b32", s(sT0), s(sT0), 2)
        A.salu("s_lshl_b32", s(sT1), s(sPs), 1)
        A.salu("s_add_u32", s(sT0), s(sT0), s(sT1))
        A.salu("s_lshl_b32", s(sT1), s(sRb), 2)
        A.salu("s_add_u32", s(sT1), s(sT1), s(sWv))
        A.salu("s_mul_i32", s(sT1), s(sT1), 28)
        A.salu("s_add_u32", s(sT0), s(sT0), s(sT1))
        A.salu("s_lshl_b32", s(sT0), s(sT0), 10)
        A.salu("s_add_u32", s(sT0), s(sT0), hex(WS_XF))
        A.bstore("buffer_store_dwordx4", v(72, 4), v(vL16), s(sWS, 4), s(sT0), mods=STM)
        A.bstore("buffer_store_dwordx4", v(76, 4), v(vL16), s(sWS, 4), s(sT0), offset=1024, mods=STM)
    A.barrier()
    if opt.get("rp_mid", 0):
        rp_part1()
    A.barrier()
    if not opt.get("rp_mid", 0):
        rp_part1()
    rp_part2()
    stamp_flush(A, opt, 0, sWS, 26, vE, vT5, sT0) if False else None
    A.misc("s_endpgm")

    A.label("K1_TEAM_Q")
    A.vm, A.lg, A.smem_pending = list(saved[0]), list(saved[1]), set(saved[2])
    if opt.get("tch"):
        A.salu("s_mul_i32", s(sT0), "s2", 7168)
        A.salu("s_lshl_b32", s(sT1), s(sWv), 11)
        A.salu("s_add_u32", s(sT0), s(sT0), s(sT1))
        make_srd(A, sX, 4, 2048 * 896)
        A.bload("buffer_load_dwordx4", v(136, 4), v(vL16), s(sX, 4), s(sT0))
        A.bload("buffer_load_dwordx4", v(140, 4), v(vL16), s(sX, 4), s(sT0), offset=1024)
        A.salu("s_mul_i32", s(sT0), "s2", 4704)
        A.salu("s_mul_i32", s(sT1), s(sWv), 1280)
        A.salu("s_add_u32", s(sT0), s(sT0), s(sT1))
        make_srd(A, sW, 6, 448 * 2688)
        A.bload("buffer_load_dwordx4", v(144, 4), v(vL16), s(sW, 4), s(sT0))
        A.bload("buffer_load_dword", v(148), v(vL16), s(sW, 4), s(sT0), offset=1024)
    ST("pre0")
    lds_addrs()
    make_srd(A, sWS, 24, WS_END)
    ST("pre1")
    accQ = acc0
    ST("pre2")
    A.barrier()
    ST("b0")
    for op in read_ops(0, 0, 0, (0,)):
        op()
    for it in range(7):
        for p in range(4):
            buf = p & 1
            if p < 3:
                rd = read_ops(it, p + 1, (p + 1) & 1, (0,))
            else:
                if it < 6:
                    A.waitcnt(lg=0)
                    A.barrier()
                    ST(f"b{it + 1}")
                    rd = read_ops(it + 1, 0, 0, (0,))
                else:
                    rd = []
            first = (it == 0 and p == 0)
            xf = v(vXF + 4 * buf, 4)
            wq = v(vWF + 8 * buf, 4)
            A.mfma32(v(accQ, 16), wq, xf, 0 if first else v(accQ, 16))
            pop(rd, 3)
            A.mfma("v_mfma_f32_4x4x4_16b_bf16", v(accSS, 4), v(vXF + 4 * buf, 2), v(vXF + 4 * buf, 2), 0 if first else v(accSS, 4))
            A.mfma("v_mfma_f32_4x4x4_16b_bf16", v(accSS + 4, 4), v(vXF + 4 * buf + 2, 2), v(vXF + 4 * buf + 2, 2), 0 if first else v(accSS + 4, 4))
            if p == 0:
                A.mfma("v_mfma_f32_16x16x32_bf16", v(accCS, 4), v(vSel, 4), wq, 0 if it == 0 else v(accCS, 4))
    ST("loop")
    vSum, vSS, vMean, vRstd = vE + 4, vE + 5, vE + 6, vE + 8
    vTa, vTb = vE + 10, vE + 11
    vXE, vWE, vCS = vE + 12, vE + 16, vE + 20
    colsum_write((0,))
    for i in range(4):
        A.valu("v_add_f32", v(accSS + i), v(accSS + i), v(accSS + 4 + i))
    A.valu("v_and_b32", v(vT1), 3, v(vL))
    A.cmp("v_cmp_eq_u32", "vcc", 1, v(vT1))
    A.cndmask(v(vTa), v(accSS), v(accSS + 1))
    A.cmp("v_cmp_eq_u32", "vcc", 2, v(vT1))
    A.cndmask(v(vTa), v(vTa), v(accSS + 2))
    A.cmp("v_cmp_eq_u32", "vcc", 3, v(vT1))
    A.cndmask(v(vTa), v(vTa), v(accSS + 3))
    sum_halves(A, v(vSS), v(vTa), v(vTb))
    bcast_hi(A, v(vSum), v(accQ + 12), v(vTb))
    A.valu("v_mul_f32", v(vMean), f32(-1.0 / 448), v(vSum))
    A.valu("v_mul_f32", v(vSS), f32(1.0 / 448), v(vSS))
    A.valu("v_fma_f32", v(vSS), "-" + v(vMean), v(vMean), v(vSS))
    A.valu("v_max_f32", v(vSS), 0, v(vSS))
    A.valu("v_add_f32", v(vSS), f32(1e-5), v(vSS))
    A.valu("v_rsq_f32", v(vRstd), v(vSS))
    A.valu("v_cvt_pk_bf16_f32", v(vXE), v(vMean), v(vMean))
    A.valu("v_lshlrev_b32", v(vTb), 16, v(vXE))
    A.valu("v_sub_f32", v(vTb), v(vMean), v(vTb))
    A.valu("v_cvt_pk_bf16_f32", v(vXE + 1), v(vTb), 0)
    A.salu("s_lshl_b32", s(sT0), s(sWv), 7)
    A.salu("s_add_u32", s(sT1), s(sT0), hex(L_RS))
    A.valu("v_lshl_add_u32", v(vT2), v(vT0), 2, s(sT1))
    A.dsw("ds_write_b32", v(vT2), v(vRstd))
    A.salu("s_lshl_b32", s(sT0), s(sWv), 8)
    A.salu("s_add_u32", s(sT1), s(sT0), hex(L_XE))
    A.valu("v_lshl_add_u32", v(vT2), v(vT0), 3, s(sT1))
    A.dsw("ds_write_b64", v(vT2), v(vXE, 2))
    A.valu("v_mov_b32", v(vXE + 2), 0)
    A.valu("v_mov_b32", v(vXE + 3), 0)
    A.valu("v_mov_b32", v(vRstd + 1), v(vRstd))
    A.waitcnt(lg=0)
    A.barrier()
    ST("e1")
    A.dsr("ds_read_b128", v(vCS, 4), v(vT4))
    A.valu("v_lshrrev_b32", v(vT1), 5, v(vL))
    A.cmp("v_cmp_eq_u32", "vcc", 0, v(vT1))
    we_frag(vCS, vWE)
    A.mfma32(v(accQ, 16), v(vWE, 4), v(vXE, 4), v(accQ, 16))
    A.salu("s_lshl_b32", s(sT0), s(sRb), 1)
    A.salu("s_lshr_b32", s(sT1), s(sWv), 1)
    A.salu("s_add_u32", s(sT0), s(sT0), s(sT1))
    A.salu("s_lshl_b32", s(sT0), s(sT0), 6)
    A.salu("s_lshl_b32", s(sT1), s(sHq), 2)
    A.salu("s_add_u32", s(sT0), s(sT0), s(sT1))
    A.salu("s_lshr_b32", s(sT1), s(sHq), 3)
    A.salu("s_xor_b32", s(sT1), s(sT1), s(sWv))
    A.salu("s_and_b32", s(sT1), s(sT1), 1)
    A.salu("s_lshl_b32", s(sT1), s(sT1), 1)
    A.salu("s_add_u32", s(sT0), s(sT0), s(sT1))
    A.salu("s_lshl_b32", s(sT0), s(sT0), 10)
    A.salu("s_add_u32", s(sT0), s(sT0), hex(WS_PQ))
    vPQ = vP + 16
    phi_pack(accQ, lambda i: v(vRstd, 2), vPQ)
    A.bstore("buffer_store_dwordx4", v(vPQ, 4), v(vL16), s(sWS, 4), s(sT0), mods=STM)
    A.bstore("buffer_store_dwordx4", v(vPQ + 4, 4), v(vL16), s(sWS, 4), s(sT0), offset=1024, mods=STM)
    A.barrier()
    ST("e2")
    stamp_flush(A, opt, 0, sWS, 26, vE, vT5, sT0)
    A.misc("s_endpgm")

    A.label("K1_TEAM_KV")
    A.vm, A.lg, A.smem_pending = list(saved[0]), list(saved[1]), set(saved[2])
    if opt.get("tch", 0) >= 2:
        A.salu("s_mul_i32", s(sT0), "s2", 6272)
        A.salu("s_mul_i32", s(sT1), s(sWv), 1600)
        A.salu("s_add_u32", s(sT0), s(sT0), s(sT1))
        for k, (b, sz) in enumerate(((12, 448 * 3584), (16, 1792 * 896))):
            make_srd(A, sRP, b, sz)
            A.bload("buffer_load_dwordx4", v(136 + 8 * k, 4), v(vL16), s(sRP, 4), s(sT0))
            A.bload("buffer_load_dwordx4", v(140 + 8 * k, 4), v(vL16), s(sRP, 4), s(sT0), offset=576)
    if opt.get("prefetch", 1):
        here = "K1_PCREF"
        A.misc(f"s_getpc_b64 {s(sPC, 2)}")
        A.raw(f"{here}:")
        A.misc(f"s_sub_u32 {s(sPC)}, {s(sPC)}, {here}-{KN}")
        A.misc(f"s_subb_u32 {s(sPC + 1)}, {s(sPC + 1)}, 0")
        A.salu("s_lshr_b32", s(sT0), "s2", 3)
        A.salu("s_lshl_b32", s(sT0), s(sT0), 2)
        A.salu("s_add_u32", s(sT0), s(sT0), s(sWv))
        A.salu("s_lshl_b32", s(sT0), s(sT0), 8)
        A.valu("v_and_b32", v(vT0), 1, v(vL))
        A.valu("v_lshl_add_u32", v(vT0), v(vT0), 7, s(sT0))
        A.misc(f"v_min_u32 {v(vT0)}, K2_END-{KN}-4, {v(vT0)}")
        A.gload("global_load_dword", v(47), v(vT0), s(sPC, 2))
    lds_addrs()
    make_srd(A, sWS, 24, WS_END)
    make_srd(A, sDBG, 22, 256)
    accK, accV = acc0, acc1
    ST("pre2")
    A.barrier()
    ST("b0")
    for op in read_ops(0, 0, 0, (1, 2)):
        op()
    for it in range(7):
        for p in range(4):
            buf = p & 1
            if p < 3:
                rd = read_ops(it, p + 1, (p + 1) & 1, (1, 2))
            else:
                if it < 6:
                    A.waitcnt(lg=0)
                    A.barrier()
                    ST(f"b{it + 1}")
                    rd = read_ops(it + 1, 0, 0, (1, 2))
                else:
                    rd = []
            first = (it == 0 and p == 0)
            xf = v(vXF + 4 * buf, 4)
            wk, wv = v(vWF + 8 * buf, 4), v(vWF + 8 * buf + 4, 4)
            A.mfma32(v(accK, 16), xf, wk, 0 if first else v(accK, 16))
            pop(rd, 3)
            A.mfma32(v(accV, 16), xf, wv, 0 if first else v(accV, 16))
            pop(rd, 2)
            if p == 0:
                for k, wf in enumerate((wk, wv)):
                    A.mfma("v_mfma_f32_16x16x32_bf16", v(accCS + 4 * k, 4), v(vSel, 4), wf, 0 if it == 0 else v(accCS + 4 * k, 4))
        if it == 5:
            A.valu("v_mov_b32", v(vT2), 0)
            A.salu("s_lshl_b32", s(sW4), s(sH), 2)
            A.bload("buffer_load_dword", v(vFlag), v(vT2), s(sDBG, 4), s(sW4), mods="sc1")
    ST("loop")
    vXE, vWE, vCS = vE + 4, vE + 8, vE + 16
    colsum_write((1, 2))
    A.valu("v_lshrrev_b32", v(vT1), 5, v(vL))
    A.salu("s_lshl_b32", s(sT0), s(sWv), 7)
    A.salu("s_add_u32", s(sT0), s(sT0), hex(L_RS))
    A.valu("v_lshl_add_u32", v(vT2), v(vT1), 4, s(sT0))
    A.salu("s_lshl_b32", s(sT0), s(sWv), 8)
    A.salu("s_add_u32", s(sT0), s(sT0), hex(L_XE))
    A.valu("v_lshl_add_u32", v(vT3), v(vT0), 3, s(sT0))
    vMk, vOv = vE + 2, vE + 3
    A.cmp("v_cmp_gt_u32", "vcc", 28, v(vT0))
    A.cndmask(v(vMk), 0, -1)
    A.cmp("v_cmp_eq_u32", "vcc", 28, v(vT0))
    A.cndmask(v(vOv), 0, v(vOnes2))
    A.valu("v_mov_b32", v(vXE + 2), 0)
    A.valu("v_mov_b32", v(vXE + 3), 0)
    A.cmp("v_cmp_eq_u32", "vcc", 0, v(vT1))
    A.waitcnt(lg=0)
    A.barrier()
    ST("e1")
    for k in range(2):
        A.dsr("ds_read_b128", v(vCS + 4 * k, 4), v(vT4), offset=16 * (k + 1))
    A.dsr("ds_read_b64", v(vXE, 2), v(vT3))
    for q in range(4):
        A.dsr("ds_read_b128", v(vR + 4 * q, 4), v(vT2), offset=32 * q)
    for k in range(2):
        we_frag(vCS + 4 * k, vWE + 4 * k)
    A.mfma32(v(accK, 16), v(vXE, 4), v(vWE, 4), v(accK, 16))
    A.mfma32(v(accV, 16), v(vXE, 4), v(vWE + 4, 4), v(accV, 16))
    vPK, vVV = vP + 16, vP + 24
    phi_pack(accK, lambda i: v(vR + i, 2), vPK)
    for i in range(8):
        A.valu("v_and_b32", v(vPK + i), v(vMk), v(vPK + i))
    for i in range(0, 16, 2):
        A.valu("v_pk_mul_f32", v(accV + i, 2), v(accV + i, 2), v(vR + i, 2))
    for i in range(0, 16, 2):
        A.valu("v_cvt_pk_bf16_f32", v(vVV + i // 2), v(accV + i), v(accV + i + 1))
        A.valu("v_and_or_b32", v(vVV + i // 2), v(vVV + i // 2), v(vMk), v(vOv))
    accKV = accK
    A.mfma32(v(accKV, 16), v(vPK, 4), v(vVV, 4), 0)
    A.mfma32(v(accKV, 16), v(vPK + 4, 4), v(vVV + 4, 4), v(accKV, 16))
    A.valu("v_add_u32", v(vT2), s(sM4), v(vL16))
    A.salu("s_lshl_b32", s(sT0), s(sWv), 10)
    A.valu("v_lshl_add_u32", v(vT3), v(vL), 2, s(sT0))
    for g in range(4):
        A.dsw("ds_write_b128", v(vT2), v(accKV + 4 * g, 4), offset=1024 * g)
    A.waitcnt(lg=0)
    A.barrier()
    ST("e2")
    vKR = accV
    for src in range(4):
        for u2 in range(2):
            o = (src * 4096 + u2 * 512) // 256
            A.dsr("ds_read2st64_b32", v(vKR + 4 * src + 2 * u2, 2), v(vT3), mods=f" offset0:{o} offset1:{o + 1}")
    A.readfirstlane(s(sT1), v(vFlag))
    A.scmp("s_cmp_lg_u32", s(sT1), 0)
    A.misc("s_cbranch_scc1 K1_FLAG_OK")
    A.salu("s_mov_b32", s(sCnt), 0)
    A.valu("v_mov_b32", v(vT1), 0)
    A.label("K1_POLL")
    A.misc(f"buffer_load_dword {v(vFlag)}, {v(vT1)}, {s(sDBG, 4)}, {s(sW4)} offen sc1")
    A.misc("s_waitcnt vmcnt(0)")
    A.misc(f"v_readfirstlane_b32 {s(sT1)}, {v(vFlag)}")
    A.misc(f"s_add_u32 {s(sCnt)}, {s(sCnt)}, 1")
    A.misc(f"s_cmp_gt_u32 {s(sCnt)}, 0x40000")
    A.misc("s_cbranch_scc1 K1_FLAG_OK")
    A.misc(f"s_cmp_eq_u32 {s(sT1)}, 0")
    A.misc("s_cbranch_scc1 K1_POLL")
    A.label("K1_FLAG_OK")
    for u in range(4):
        A.valu("v_add_f32", v(vKR + u), v(vKR + u), v(vKR + 4 + u))
        A.valu("v_add_f32", v(vKR + 8 + u), v(vKR + 8 + u), v(vKR + 12 + u))
        A.valu("v_add_f32", v(vKR + u), v(vKR + u), v(vKR + 8 + u))
    A.salu("s_lshl_b32", s(sT1), s(sH), 12)
    A.salu("s_add_u32", s(sT1), s(sT1), hex(WS_KV))
    for u in range(4):
        A.bstore("buffer_atomic_add_f32", v(vKR + u), v(vT3), s(sWS, 4), s(sT1), offset=256 * u)
    ST("at")
    stamp_flush(A, opt, 0, sWS, 26, vE, vT5, sT0)
    A.label("K1_DONE")
    A.misc("s_endpgm")
    A.label("K1_END")
    return A.text(), LDS_BYTES


def gen_k2(opt):
    A = Asm()
    KN = "k2_kernel"
    L_W1 = 0
    L_RB = 114688
    L_CNT = L_RB + 1024
    LDS_BYTES = 163840
    sX, sWS, sOUT, sB2 = 28, 32, 36, 40
    sWv, sG, sJ, sRt2, sCt, sT0, sT1, sT2, sT3 = 44, 45, 46, 47, 48, 49, 50, 51, 52
    sWhi, sWlo, sCnt, sMyFl = 53, 54, 55, 56
    sRow, sCol = 58, 59
    sW2p, sH1p, sFl, sPollB = 60, 61, 62, 63
    sW1s, sW1m = 64, 65
    sOne = 66
    sK4 = 68
    sColB, sRowC, sHs = 72, 73, 74
    sH1a, sH1b = 75, 76

    A.raw(f".globl {KN}")
    A.raw(".p2align 8")
    A.raw(f".type {KN},@function")
    A.raw(f"{KN}:")
    A.scmp("s_cmp_ge_u32", "s2", 224)
    A.misc("s_cbranch_scc1 K2_DONE")
    SM = {"bc": 1, "f0": 2, "p0": 3, "c1": 4, "ce": 5, "p2": 6, "dm": 7}
    if opt.get("stamps") == 4:
        SM = {"p0": 1, "ce": 2}
    ST = lambda k: stamp(A, opt, SM.get(k))
    stamp(A, opt, 0)
    A.sload("s_load_dwordx2", s(24, 2), s(0, 2), 80)
    A.sload("s_load_dwordx4", s(16, 4), s(0, 2), 56)

    vL, vL16, vT0, vT1, vT2, vT3, vT4, vT5 = 1, 2, 3, 4, 5, 6, 7, 8
    vHH, vR31, vOne = 9, 10, 11
    vRes = 12
    vB2 = 20
    vL16b, vRs2, vZ, vIdxB = 28, 29, 30, 31
    vKV = 32
    vPQ = 96
    acc = 160
    vTA = 224
    aWO = 0

    A.valu("v_and_b32", v(vL), 63, "v0")
    A.valu("v_lshrrev_b32", v(vT0), 6, "v0")
    A.readfirstlane(s(sWv), v(vT0))
    A.valu("v_lshlrev_b32", v(vL16), 4, v(vL))
    A.valu("v_lshrrev_b32", v(vHH), 5, v(vL))
    A.valu("v_and_b32", v(vR31), 31, v(vL))
    A.salu("s_and_b32", s(sT0), "s2", 7)
    A.salu("s_lshr_b32", s(sT1), "s2", 3)
    A.scmp("s_cmp_ge_u32", s(sT1), 14)
    A.salu("s_cselect_b32", s(sT2), 1, 0)
    A.salu("s_lshl_b32", s(sG), s(sT0), 1)
    A.salu("s_add_u32", s(sG), s(sG), s(sT2))
    A.salu("s_mul_i32", s(sT2), s(sT2), 14)
    A.salu("s_sub_u32", s(sJ), s(sT1), s(sT2))
    A.scmp("s_cmp_ge_u32", s(sJ), 7)
    A.salu("s_cselect_b32", s(sRt2), 1, 0)
    A.salu("s_mul_i32", s(sT2), s(sRt2), 7)
    A.salu("s_sub_u32", s(sCt), s(sJ), s(sT2))
    A.salu("s_lshr_b32", s(sWhi), s(sWv), 1)
    A.salu("s_and_b32", s(sWlo), s(sWv), 1)
    A.salu("s_movk_i32", s(sK4), 4096)
    A.salu("s_movk_i32", s(sK4 + 1), 8192)
    A.salu("s_movk_i32", s(sK4 + 2), 12288)
    vKVo, vPQo, vWOo = vT1, vT2, vT3
    A.salu("s_lshl_b32", s(sT0), s(sWv), 14)
    A.valu("v_add_u32", v(vKVo), s(sT0), v(vL16))
    A.salu("s_lshl_b32", s(sT1), s(sG), 1)
    A.salu("s_add_u32", s(sT1), s(sT1), s(sRt2))
    A.salu("s_lshl_b32", s(sT2), s(sT1), 16)
    A.salu("s_add_u32", s(sT2), s(sT2), s(sT0))
    A.salu("s_add_u32", s(sT2), s(sT2), hex(WS_PQ))
    A.valu("v_add_u32", v(vPQo), s(sT2), v(vL16))
    A.salu("s_lshl_b32", s(sT2), s(sCt), 16)
    A.salu("s_add_u32", s(sT2), s(sT2), s(sT0))
    A.salu("s_add_u32", s(sT2), s(sT2), hex(WS_WO))
    A.valu("v_add_u32", v(vWOo), s(sT2), v(vL16))
    make_srd(A, sWS, 24, WS_END)

    def b_load_ops(hd):
        so = 0 if hd == 0 else s(sK4 + hd - 1)
        ops = []
        for g in range(4):
            ops.append(lambda g=g: A.bload("buffer_load_dwordx4", v(vKV + 16 * hd + 4 * g, 4), v(vKVo), s(sWS, 4), so, offset=1024 * g))
        for i in range(4):
            ops.append(lambda i=i: A.bload("buffer_load_dwordx4", v(vPQ + 16 * hd + 4 * i, 4), v(vPQo), s(sWS, 4), so, offset=1024 * i))
        for i in range(4):
            ops.append(lambda i=i: A.bload("buffer_load_dwordx4", a(aWO + 16 * hd + 4 * i, 4), v(vWOo), s(sWS, 4), so, offset=1024 * i))
        return ops

    bq = b_load_ops(0) + b_load_ops(1) + b_load_ops(2) + b_load_ops(3)
    pop(bq, opt.get("b_pre", 16))

    A.salu("s_lshl_b32", s(sRow), s(sT1), 1)
    A.salu("s_add_u32", s(sRow), s(sRow), s(sWhi))
    A.salu("s_lshl_b32", s(sCol), s(sCt), 1)
    A.salu("s_add_u32", s(sCol), s(sCol), s(sWlo))
    A.salu("s_lshl_b32", s(sT2), s(sT1), 2)
    A.salu("s_add_u32", s(sT2), s(sT2), s(sWv))
    A.salu("s_mul_i32", s(sT2), s(sT2), 56 * 1024)
    A.salu("s_add_u32", s(sH1p), s(sT2), hex(WS_H1))
    A.salu("s_lshl_b32", s(sT2), s(sCt), 2)
    A.salu("s_add_u32", s(sT2), s(sT2), s(sWv))
    A.salu("s_mul_i32", s(sT2), s(sT2), 56 * 1024)
    A.salu("s_add_u32", s(sW2p), s(sT2), hex(WS_W2))
    make_srd(A, sOUT, 18, 2048 * 896)
    make_srd(A, sB2, 16, 896)
    A.salu("s_mov_b32", s(sOne), "1.0")
    A.salu("s_mov_b32", s(sOne + 1), "1.0")
    A.salu("s_lshl_b32", s(sT0), s(sRow), 5)
    A.valu("v_add_u32", v(vT0), s(sT0), v(vR31))
    A.salu("s_movk_i32", s(sT1), 896)
    A.valu("v_mul_lo_u32", v(vT0), v(vT0), s(sT1))
    A.valu("v_lshl_add_u32", v(vT5), v(vHH), 3, v(vT0))
    A.salu("s_lshl_b32", s(sColB), s(sCol), 6)
    A.valu("v_lshlrev_b32", v(vT4), 3, v(vHH))
    sXf = 77
    A.salu("s_mul_i32", s(sT0), s(sRow), 28)
    A.salu("s_lshl_b32", s(sT1), s(sCol), 1)
    A.salu("s_add_u32", s(sT0), s(sT0), s(sT1))
    A.salu("s_lshl_b32", s(sT0), s(sT0), 10)
    A.salu("s_add_u32", s(sXf), s(sT0), hex(WS_XF))
    A.salu("s_add_u32", s(78), s(sT0), hex(WS_H))
    for f in range(2):
        bq.append(lambda f=f: A.bload("buffer_load_dwordx4", v(vRes + 4 * f, 4), v(vL16), s(sWS, 4), s(sXf), offset=1024 * f))
    aID = 240
    A.valu("v_lshlrev_b32", v(vT0), 3, v(vHH))
    A.valu("v_sub_u32", v(vT0), v(vR31), v(vT0))
    for f in range(2):
        for dw in range(4):
            A.cmp("v_cmp_eq_u32", "vcc", 16 * f + 2 * dw, v(vT0))
            A.cndmask(v(vRs2), 0, "0x3f80" if False else v(vOne), "vcc") if False else None
            A.valu("v_mov_b32", v(vL16b), "0x3f80")
            A.cndmask(v(vRs2), 0, v(vL16b))
            A.cmp("v_cmp_eq_u32", "vcc", 16 * f + 2 * dw + 1, v(vT0))
            A.valu("v_mov_b32", v(vL16b), "0x3f800000")
            A.cndmask(v(vRs2), v(vRs2), v(vL16b))
            A.valu("v_accvgpr_write_b32", a(aID + 4 * f + dw), v(vRs2))
    for q in range(4):
        bq.append(lambda q=q: A.bload("buffer_load_dwordx2", v(vB2 + 2 * q, 2), v(vT4), s(sB2, 4), s(sColB), offset=16 * q))
    A.salu("s_lshl_b32", s(sT0), s(sJ), 2)
    A.salu("s_add_u32", s(sT0), s(sT0), s(sWv))
    A.salu("s_mul_i32", s(sT0), s(sT0), 29 * 1024)
    A.salu("s_add_u32", s(sW1s), s(sT0), hex(WS_W1))
    A.salu("s_mul_i32", s(sW1m), s(sWv), 28672)
    pf = []
    for n in range(7):
        for i in range(4):
            def op(n=n, i=i):
                if i == 0:
                    A.salu("s_add_u32", "m0", s(sW1m), hex(L_W1 + n * 4096))
                A.dma(v(vL16), s(sWS, 4), s(sW1s), offset=1024 * i)
                if i == 3:
                    A.salu("s_add_u32", s(sW1s), s(sW1s), 4096)
            pf.append(op)
    aW1E = 224
    for c4 in range(4):
        def op(c4=c4):
            A.salu("s_mul_i32", s(sT3), s(sJ), 4 * 29 * 1024)
            A.salu("s_add_u32", s(sT3), s(sT3), hex(WS_W1 + 28 * 1024 + c4 * 29 * 1024))
            A.bload("buffer_load_dwordx4", a(aW1E + 4 * c4, 4), v(vL16), s(sWS, 4), s(sT3))
        pf.append(op)
    NW1 = len(pf)
    if opt.get("abl2", 0) & 1:
        del pf[:]
    wq = []
    for k in range(0 if opt.get("abl2", 0) & 1 else 56):
        def op(k=k):
            A.bload("buffer_load_dwordx4", a(4 * k, 4), v(vL16), s(sWS, 4), s(sW2p), offset=(k % 4) * 1024)
            if k % 4 == 3:
                A.salu("s_add_u32", s(sW2p), s(sW2p), 4096)
        wq.append(op)
    A.salu("s_lshl_b32", s(sFl), s(sG), 11)
    A.salu("s_add_u32", s(sFl), s(sFl), hex(WS_FLAGS))
    A.salu("s_lshl_b32", s(sT0), s(sJ), 7)
    A.salu("s_add_u32", s(sMyFl), s(sT0), s(sFl))
    A.valu("v_mov_b32", v(vOne), 1)
    A.valu("v_mov_b32", v(vZ), 0)
    A.valu("v_min_u32", v(vT0), 6, v(vL))
    A.salu("s_mul_i32", s(sT0), s(sWhi), 7)
    A.valu("v_add_u32", v(vT0), s(sT0), v(vT0))
    A.valu("v_lshlrev_b32", v(vIdxB), 7, v(vT0))
    A.valu("v_add_u32", v(vL16b), hex(57344), v(vL16))

    units = [(hd, aa) for hd in range(4) for aa in range(2)]
    bcount = [0]
    NW1A = [opt.get("w1a", 12)]
    vN0, vN1, vN2 = vT0, vRs2, vL16b

    def bpop():
        bcount[0] += 1
        if bq:
            pop(bq, opt.get("bsp", 2))
        elif NW1A[0] > 0 and bcount[0] % opt.get("w1a_every", 2) == 0:
            pop(pf)
            NW1A[0] -= 1

    def b_stage1(u):
        hd, aa = units[u]
        if aa == 0:
            base = vKV + 16 * hd
            for i in range(8):
                A.valu("v_cvt_pk_bf16_f32", v(base + i), v(base + 2 * i), v(base + 2 * i + 1))
        t = vTA + 16 * (u & 1)
        A.mfma32(v(t, 16), v(vKV + 16 * hd, 4), v(vPQ + 16 * hd + 8 * aa, 4), 0)
        bpop()
        A.mfma32(v(t, 16), v(vKV + 16 * hd + 4, 4), v(vPQ + 16 * hd + 8 * aa + 4, 4), v(t, 16))
        bpop()

    def b_norm(u):
        t = vTA + 16 * (u & 1)
        A.valu("v_add_f32", v(vN0), f32(1e-6), v(t + 12))
        A.valu("v_rcp_f32", v(vN0), v(vN0))
        bcast_hi(A, v(vN1), v(vN0), v(vN2))
        for i in range(16):
            A.valu("v_mul_f32", v(t + i), v(vN1), v(t + i))
        for i in range(8):
            A.valu("v_cvt_pk_bf16_f32", v(t + i), v(t + 2 * i), v(t + 2 * i + 1))

    def b_stage2(u):
        hd, aa = units[u]
        t = vTA + 16 * (u & 1)
        for f in range(2):
            for bb in range(2):
                blk = acc + 16 * (2 * aa + bb)
                first = (hd == 0 and f == 0)
                A.mfma32(v(blk, 16), a(aWO + 16 * hd + 8 * f + 4 * bb, 4), v(t + 4 * f, 4), 0 if first else v(blk, 16))
                bpop()

    b_stage1(0)
    for u in range(8):
        if u + 1 < 8:
            b_stage1(u + 1)
        b_norm(u)
        b_stage2(u)
    assert not bq
    for f in range(2):
        A.mfma32(v(acc, 16), a(aID + 4 * f, 4), v(vRes + 4 * f, 4), v(acc, 16))
    ST("bc")
    A.valu("v_add_u32", v(vL16b), hex(57344), v(vL16))

    vRA = 240

    def red_addrs(base):
        for r in range(1, 4):
            A.salu("s_xor_b32", s(sT0), s(sWv), r)
            A.salu("s_mul_i32", s(sT0), s(sT0), 3 * 4096)
            A.salu("s_add_u32", s(sT0), s(sT0), hex(base + (r - 1) * 4096))
            A.valu("v_add_u32", v(vRA + r), s(sT0), v(vL16))
        A.salu("s_mul_i32", s(sT0), s(sWv), 3 * 4096)
        if base:
            A.salu("s_add_u32", s(sT0), s(sT0), hex(base))
        A.valu("v_add_u32", v(vRA), s(sT0), v(vL16))

    def red_write(r):
        for g in range(4):
            A.dsw("ds_write_b128", v(vRA + r), v(acc + 16 * r + 4 * g, 4), offset=1024 * g)

    def red_finish(rbuf):
        A.waitcnt(lg=0)
        A.barrier()
        for r in range(3):
            for g in range(4):
                A.dsr("ds_read_b128", v(rbuf + 16 * r + 4 * g, 4), v(vRA), offset=4096 * r + 1024 * g)
        for r in range(3):
            for i in range(0, 16, 2):
                A.valu("v_pk_add_f32", v(acc + i, 2), v(acc + i, 2), v(rbuf + 16 * r + i, 2))

    def reduce_tiles(rbuf, base, side=None, nside=0):
        for r in range(1, 4):
            A.salu("s_xor_b32", s(sT0), s(sWv), r)
            A.salu("s_mul_i32", s(sT0), s(sT0), 3 * 4096)
            A.salu("s_add_u32", s(sT0), s(sT0), hex(base + (r - 1) * 4096))
            A.valu("v_add_u32", v(vT0), s(sT0), v(vL16))
            for g in range(4):
                A.dsw("ds_write_b128", v(vT0), v(acc + 16 * r + 4 * g, 4), offset=1024 * g)
        A.salu("s_mul_i32", s(sT0), s(sWv), 3 * 4096)
        if base:
            A.salu("s_add_u32", s(sT0), s(sT0), hex(base))
        A.valu("v_add_u32", v(vT0), s(sT0), v(vL16))
        if side is not None:
            pop(side, nside)
        A.waitcnt(lg=0)
        A.barrier()
        for r in range(3):
            for g in range(4):
                A.dsr("ds_read_b128", v(rbuf + 16 * r + 4 * g, 4), v(vT0), offset=4096 * r + 1024 * g)
        for r in range(3):
            for i in range(0, 16, 2):
                A.valu("v_pk_add_f32", v(acc + i, 2), v(acc + i, 2), v(rbuf + 16 * r + i, 2))

    reduce_tiles(vKV, L_RB, pf, opt.get("w1r", 6))
    for i in range(8):
        A.valu("v_cvt_pk_bf16_f32", v(vRes + i), v(acc + 2 * i), v(acc + 2 * i + 1))
    A.bstore("buffer_store_dwordx4", v(vRes, 4), v(vL16), s(sWS, 4), s(78), mods="sc1")
    A.bstore("buffer_store_dwordx4", v(vRes + 4, 4), v(vL16), s(sWS, 4), s(78), offset=1024, mods="sc1")
    vS1, vS2 = vTA, vTA + 1
    A.valu("v_mov_b32", v(vT2), "0x3f803f80")
    A.valu("v_dot2_f32_bf16", v(vT0), v(vRes), v(vT2), 0)
    A.valu("v_dot2_f32_bf16", v(vT1), v(vRes), v(vRes), 0)
    for i in range(1, 8):
        A.valu("v_dot2_f32_bf16", v(vT0), v(vRes + i), v(vT2), v(vT0))
        A.valu("v_dot2_f32_bf16", v(vT1), v(vRes + i), v(vRes + i), v(vT1))
    sum_halves(A, v(vS1), v(vT0), v(vT3))
    sum_halves(A, v(vS2), v(vT1), v(vT3))
    A.cmp("v_cmp_eq_u32", "vcc", 0, v(vHH))
    A.valu("v_lshlrev_b32", v(vT0), 3, v(vR31))
    A.valu("v_mov_b32", v(vT1), hex(OOB))
    A.cndmask(v(vT0), v(vT1), v(vT0))
    A.salu("s_mul_i32", s(sT0), s(sRow), 14)
    A.salu("s_add_u32", s(sT0), s(sT0), s(sCol))
    A.salu("s_lshl_b32", s(sT0), s(sT0), 8)
    A.salu("s_add_u32", s(sT0), s(sT0), hex(WS_HST))
    A.bstore("buffer_store_dwordx2", v(vS1, 2), v(vT0), s(sWS, 4), s(sT0), mods="sc1")

    vIdxD, vP = 254, 255

    def post_flag(idx):
        A.salu("s_add_u32", s(sT0), s(sMyFl), idx * 32768)
        if idx == 0:
            A.scmp("s_cmp_eq_u32", s(sWv), 0)
        else:
            A.valu("v_mov_b32", v(vT0), hex(L_CNT + 4 * idx))
            A.salu("s_mov_b64", "exec", 1)
            A.dsr("ds_add_rtn_u32", v(vT1), v(vT0) + ", " + v(vOne), mods="")
            A.salu("s_mov_b64", "exec", -1)
            A.readfirstlane(s(sT1), v(vT1))
            A.scmp("s_cmp_eq_u32", s(sT1), 3)
        A.salu("s_cselect_b32", s(sT0), s(sT0), hex(OOB))
        A.bstore("buffer_store_dword", v(vOne), v(vZ), s(sWS, 4), s(sT0), mods="sc1")

    def poll_issue(idx, vidx):
        A.salu("s_add_u32", s(sPollB), s(sFl), idx * 32768)
        A.bload("buffer_load_dword", v(vP), v(vidx), s(sWS, 4), s(sPollB), mods="sc1")

    def poll_check(tag, vidx):
        A.cmp("v_cmp_ne_u32", "vcc", 1, v(vP))
        A.salu("s_mov_b32", s(sCnt), 0)
        A.misc("s_nop 1")
        A.misc(f"s_cbranch_vccz K2_OK{tag}")
        A.label(f"K2_POLL{tag}")
        A.misc(f"buffer_load_dword {v(vP)}, {v(vidx)}, {s(sWS, 4)}, {s(sPollB)} offen sc1")
        A.misc("s_waitcnt vmcnt(0)")
        A.misc(f"v_cmp_ne_u32 vcc, 1, {v(vP)}")
        A.misc(f"s_add_u32 {s(sCnt)}, {s(sCnt)}, 1")
        A.misc(f"s_cmp_gt_u32 {s(sCnt)}, 0x40000")
        A.misc(f"s_cbranch_scc1 K2_OK{tag}")
        A.misc("s_nop 1")
        A.misc(f"s_cbranch_vccnz K2_POLL{tag}")
        A.label(f"K2_OK{tag}")

    A.salu("s_lshl_b32", s(sRowC), s(sG), 2)
    A.salu("s_add_u32", s(sRowC), s(sRowC), s(sWv))
    A.salu("s_mul_i32", s(sHs), s(sRowC), 28 * 1024)
    A.salu("s_add_u32", s(sHs), s(sHs), hex(WS_H))
    A.salu("s_mul_i32", s(sT2), s(sRowC), 14 * 256)
    A.salu("s_add_u32", s(sT2), s(sT2), hex(WS_HST))
    A.valu("v_mul_u32_u24", v(vT4), 7 * 256, v(vHH))
    A.valu("v_lshl_add_u32", v(vT4), v(vR31), 3, v(vT4))
    A.valu("v_add_u32", v(vT4), s(sT2), v(vT4))
    A.salu("s_lshr_b32", s(sT0), s(sRowC), 1)
    A.salu("s_mul_i32", s(sT0), s(sT0), 4 * 56)
    A.salu("s_lshl_b32", s(sT1), s(sJ), 1)
    A.salu("s_add_u32", s(sT0), s(sT0), s(sT1))
    A.salu("s_add_u32", s(sT1), s(sT0), s(sWlo))
    A.salu("s_lshl_b32", s(sT1), s(sT1), 10)
    A.salu("s_add_u32", s(sH1a), s(sT1), hex(WS_H1))
    A.salu("s_xor_b32", s(sT1), s(sWlo), 1)
    A.salu("s_add_u32", s(sT1), s(sT0), s(sT1))
    A.salu("s_lshl_b32", s(sT1), s(sT1), 10)
    A.salu("s_add_u32", s(sH1b), s(sT1), hex(WS_H1))

    vTch = 239
    A.valu("v_bfe_u32", v(vT0), v(vL), 3, 2)
    A.valu("v_mul_u32_u24", v(vT0), 56 * 1024, v(vT0))
    A.valu("v_and_b32", v(vT1), 7, v(vL))
    A.valu("v_lshl_add_u32", v(vT0), v(vT1), 7, v(vT0))
    A.valu("v_bfe_u32", v(vT1), v(vL), 4, 1)
    A.cmp("v_cmp_eq_u32", "vcc", 1, v(vT1))
    A.valu("v_mov_b32", v(vT1), s(sH1a))
    A.valu("v_mov_b32", v(vT2), s(sH1b))
    A.cndmask(v(vT1), v(vT1), v(vT2))
    A.valu("v_add_u32", v(vRs2), v(vT0), v(vT1))
    A.salu("s_movk_i32", s(80), 28 * 1024)
    A.waitcnt(vm=0, lg=0)
    A.barrier()
    post_flag(0)
    if opt.get("tch2", 0) & 1:
        A.valu("v_min_u32", v(vT0), 15, v(vL))
        A.valu("v_lshlrev_b32", v(vT0), 7, v(vT0))
        A.bload("buffer_load_dword", a(248), v(vT0), s(sWS, 4), s(78), mods="sc1")
    A.valu("v_mov_b32", v(vT0), hex(L_CNT))
    A.dsw("ds_write_b32", v(vT0), v(vZ), offset=4)
    A.dsw("ds_write_b32", v(vT0), v(vZ), offset=8)
    ST("f0")
    pop(pf, 100)
    pop(wq, opt.get("w2_g1", 8))
    poll_issue(0, vIdxB)
    poll_check("A", vIdxB)
    ST("p0")

    vH = 32
    vWF = 144
    accC = 160
    vST = 224
    vHE = 240
    vC1, vC2 = 238, 244
    vG = 246
    hq = []
    for ks in range(28):
        def op(ks=ks):
            A.bload("buffer_load_dwordx4", v(vH + 4 * ks, 4), v(vL16), s(sWS, 4), s(sHs), offset=(ks % 4) * 1024, mods="sc1")
            if ks % 4 == 3:
                A.salu("s_add_u32", s(sHs), s(sHs), 4096)
        hq.append(op)
    for u in range(7):
        hq.append(lambda u=u: A.bload("buffer_load_dwordx2", v(vST + 2 * u, 2), v(vT4), s(sWS, 4), 0, offset=256 * u, mods="sc1"))
    pop(hq, opt.get("h_pre", 14))
    A.waitcnt(lg=0)
    A.barrier()

    def w1_read(c4, ks, buf):
        off = (c4 * 28 + ks) * 1024
        if off >= 57344:
            A.dsr("ds_read_b128", v(vWF + 4 * buf, 4), v(vL16b), offset=off - 57344)
        else:
            A.dsr("ds_read_b128", v(vWF + 4 * buf, 4), v(vL16), offset=off)

    def c_stats():
        for u in range(1, 7):
            A.valu("v_add_f32", v(vST), v(vST), v(vST + 2 * u))
            A.valu("v_add_f32", v(vST + 1), v(vST + 1), v(vST + 2 * u + 1))
        sum_halves(A, v(vST + 2), v(vST), v(vT0))
        sum_halves(A, v(vST + 3), v(vST + 1), v(vT0))
        m, var, sg, rs = vST + 4, vST + 5, vST + 6, vST + 7
        A.valu("v_mul_f32", v(m), f32(-1.0 / 448), v(vST + 2))
        A.valu("v_mul_f32", v(var), f32(1.0 / 448), v(vST + 3))
        A.valu("v_fma_f32", v(var), "-" + v(m), v(m), v(var))
        A.valu("v_max_f32", v(var), 0, v(var))
        A.valu("v_add_f32", v(var), f32(1e-5), v(var))
        A.valu("v_rsq_f32", v(rs), v(var))
        A.valu("v_mul_f32", v(sg), v(var), v(rs))
        A.valu("v_cvt_pk_bf16_f32", v(vHE), v(m), v(m))
        A.valu("v_lshlrev_b32", v(vT0), 16, v(vHE))
        A.valu("v_sub_f32", v(vT0), v(m), v(vT0))
        A.valu("v_cvt_pk_bf16_f32", v(vHE + 1), v(vT0), v(sg))
        A.valu("v_and_b32", v(vT0), "0xffff0000", v(vHE + 1))
        A.valu("v_sub_f32", v(vT0), v(sg), v(vT0))
        A.valu("v_cvt_pk_bf16_f32", v(vHE + 2), v(vT0), 0)
        A.valu("v_mov_b32", v(vHE + 3), 0)
        A.valu("v_mul_f32", v(vC1), f32(GC1), v(rs))
        A.valu("v_mul_f32", v(vT0), v(rs), v(rs))
        A.valu("v_mul_f32", v(vT0), v(vT0), v(rs))
        A.valu("v_mul_f32", v(vC2), f32(GC2), v(vT0))
        A.salu("s_lshl_b32", s(sT0), s(sWv), 7)
        A.salu("s_add_u32", s(sT0), s(sT0), hex(L_RB))
        A.valu("v_lshl_add_u32", v(vT0), v(vR31), 2, s(sT0))
        A.dsw("ds_write_b32", v(vT0), v(rs))

    st_tok = {}

    def h1_store(c4, f):
        ab = accC + 16 * c4
        wd = 2 * (c4 & 1) + f
        A.salu("s_add_u32", s(sT3), s(sH1b if (c4 & 1) else sH1a), (wd * 56 + 28 * (c4 >> 1)) * 1024)
        st_tok[(c4, f)] = A.bstore("buffer_store_dwordx4", v(ab + 4 * f, 4), v(vL16), s(sWS, 4), s(sT3), mods="sc1")

    def quad_ops(c4, q, packed):
        ab = accC + 16 * c4 + 4 * q
        t = vG + 4 * (q & 1)
        ops = []
        if (opt.get("abl2", 0) & 2) and c4 < 2:
            pass
        elif packed:
            for k in (0, 2):
                ops.append((5, lambda k=k: A.valu("v_pk_mul_f32", v(t + k, 2), v(ab + k, 2), v(ab + k, 2))))
            for k in (0, 2):
                ops.append((5, lambda k=k: A.valu("v_pk_fma_f32", v(t + k, 2), v(t + k, 2), v(vC2, 2), v(vC1, 2), mods="op_sel_hi:[1,0,0]")))
            for k in (0, 2):
                ops.append((5, lambda k=k: A.valu("v_pk_mul_f32", v(t + k, 2), v(t + k, 2), v(ab + k, 2))))
            for k in range(4):
                ops.append((8, lambda k=k: A.valu("v_exp_f32", v(t + k), v(t + k))))
            for k in (0, 2):
                ops.append((5, lambda k=k: A.valu("v_pk_add_f32", v(t + k, 2), v(t + k, 2), s(sOne, 2))))
            for k in range(4):
                ops.append((8, lambda k=k: A.valu("v_rcp_f32", v(t + k), v(t + k))))
            for k in (0, 2):
                ops.append((5, lambda k=k: A.valu("v_pk_mul_f32", v(t + k, 2), v(t + k, 2), v(ab + k, 2))))
        else:
            for k in range(4):
                ops.append((4, lambda k=k: A.valu("v_mul_f32", v(t + k), v(ab + k), v(ab + k))))
            for k in range(4):
                ops.append((5, lambda k=k: A.valu("v_fma_f32", v(t + k), v(t + k), v(vC2), v(vC1))))
            for k in range(4):
                ops.append((4, lambda k=k: A.valu("v_mul_f32", v(t + k), v(t + k), v(ab + k))))
            for k in range(4):
                ops.append((8, lambda k=k: A.valu("v_exp_f32", v(t + k), v(t + k))))
            for k in range(4):
                ops.append((4, lambda k=k: A.valu("v_add_f32", v(t + k), "1.0", v(t + k))))
            for k in range(4):
                ops.append((8, lambda k=k: A.valu("v_rcp_f32", v(t + k), v(t + k))))
            for k in range(4):
                ops.append((4, lambda k=k: A.valu("v_mul_f32", v(t + k), v(t + k), v(ab + k))))
        d = accC + 16 * c4 + 2 * q
        for k in (0, 2):
            ops.append((5, lambda k=k: A.valu("v_cvt_pk_bf16_f32", v(d + k // 2), v(t + k), v(t + k + 1))))
        if q & 1:
            ops.append((10, lambda: h1_store(c4, q >> 1)))
        return ops

    NP1 = opt.get("c_p1", 3)
    seq = [(ks, c4) for ks in range(28) for c4 in range(NP1)]
    for c4 in range(NP1, 4):
        seq += [(ks, c4) for ks in range(28)]
    n_p1 = 28 * NP1
    quads = []
    cur = []
    est = [0, 0]
    W2GAP = opt.get("w2_pace", 70)

    def pace():
        if wq and est[0] - est[1] >= W2GAP:
            pop(wq)
            est[1] = est[0]
            est[0] += 25

    def fill(budget, packed):
        used = 0
        while used < budget:
            if not cur:
                if not quads:
                    break
                c4, q = quads.pop(0)
                cur.extend(quad_ops(c4, q, packed))
            c, fn = cur.pop(0)
            fn()
            used += c
        return used

    NB = 4
    ready_at = {}
    for n in range(3):
        w1_read(seq[n][1], seq[n][0], n % NB)
    for n, (ks, c4) in enumerate(seq):
        if n + 3 < len(seq):
            w1_read(seq[n + 3][1], seq[n + 3][0], (n + 3) % NB)
        ab = accC + 16 * c4
        A.mfma32(v(ab, 16), v(vWF + 4 * (n % NB), 4), v(vH + 4 * ks, 4), 0 if ks == 0 else v(ab, 16))
        if n < n_p1 and c4 == 0:
            pop(hq, 1 if len(hq) > 7 else 2)
        if n == n_p1 - NP1:
            assert not hq
            c_stats()
        if ks == 27:
            A.mfma32(v(ab, 16), a(aW1E + 4 * c4, 4), v(vHE, 4), v(ab, 16))
            ready_at[max(n + 2, n_p1 + 1)] = ready_at.get(max(n + 2, n_p1 + 1), []) + [c4]
        if n == n_p1 + 1:
            ST("c1")
        for c in ready_at.pop(n, []):
            quads.extend((c, q) for q in range(4))
        used = fill(opt.get("c_budget", 20), False) if n > n_p1 else 0
        if n >= opt.get("w2_start", 20):
            est[0] += max(32, 13 + used)
            pace()
    for k in sorted(ready_at):
        for c in ready_at[k]:
            quads.extend((c, q) for q in range(4))
    A.valu("v_min_u32", v(vIdxD), 13, v(vL))
    A.valu("v_lshlrev_b32", v(vIdxD), 7, v(vIdxD))
    f1_posted, f1_polled = False, False
    while quads or cur:
        used = fill(40, True)
        est[0] += used
        pace()
        if not f1_posted and (1, 1) in st_tok and len(quads) <= opt.get("f1_at", 7):
            A.wait_vm_token(st_tok[(1, 1)])
            post_flag(1)
            if opt.get("tch2", 0) & 2:
                A.bload("buffer_load_dword", a(249), v(vRs2), s(sWS, 4), 0, mods="sc1")
            f1_posted = True
        if f1_posted and not f1_polled and len(quads) <= opt.get("f1_poll_at", 1):
            poll_issue(1, vIdxD)
            f1_polled = True
    assert f1_posted and f1_polled
    ST("ce")

    vD = 32
    WIN = 14
    DPRE = opt.get("d_pre", 6)
    dq = []
    for k in range(56):
        def op(k=k):
            if k == 28:
                poll_check("C", vIdxD)
                ST("p2")
            A.bload("buffer_load_dwordx4", v(vD + 4 * (k % 28), 4), v(vL16), s(sWS, 4), s(sH1p), offset=(k % 4) * 1024, mods="sc1")
            if k % 4 == 3:
                A.salu("s_add_u32", s(sH1p), s(sH1p), 4096)
            if k == opt.get("f2_poll_k", 23):
                poll_issue(2, vIdxD)
        dq.append(op)
    poll_check("B", vIdxD)
    pop(dq, 2 * opt.get("d_pre0", 3))
    A.wait_vm_token(st_tok[(3, 1)])
    A.waitcnt(lg=0)
    post_flag(2)
    if opt.get("tch2", 0) & 4:
        A.bload("buffer_load_dword", a(250), v(vRs2), s(sWS, 4), s(80), mods="sc1")
    pop(dq, 2 * (DPRE - opt.get("d_pre0", 3)))
    pop(wq, 100)
    vHB = 224
    pre = []
    for i in range(8):
        pre.append(lambda i=i: A.valu("v_lshlrev_b32", v(vHB + 2 * i), 16, v(vRes + i)))
        pre.append(lambda i=i: A.valu("v_and_b32", v(vHB + 2 * i + 1), "0xffff0000", v(vRes + i)))
        pre.append(lambda i=i: A.valu("v_lshlrev_b32", v(vT2), 16, v(vB2 + i)))
        pre.append(lambda i=i: A.valu("v_and_b32", v(vT3), "0xffff0000", v(vB2 + i)))
        pre.append(lambda i=i: A.valu("v_add_f32", v(vHB + 2 * i), v(vHB + 2 * i), v(vT2)))
        pre.append(lambda i=i: A.valu("v_add_f32", v(vHB + 2 * i + 1), v(vHB + 2 * i + 1), v(vT3)))
    NL = opt.get("d_last", 3)
    for pos in range(28 - NL):
        for aa in range(2):
            for bb in range(2):
                blk = acc + 16 * (2 * aa + bb)
                A.mfma32(v(blk, 16), a(8 * pos + 4 * bb, 4), v(vD + 8 * (pos % WIN) + 4 * aa, 4), 0 if pos == 0 else v(blk, 16))
                if pos >= 2:
                    pop(pre, 1)
            pop(dq)
        if pos == 20:
            A.salu("s_lshl_b32", s(sT0), s(sRt2), 1)
            A.salu("s_add_u32", s(sT0), s(sT0), s(sWhi))
            A.salu("s_lshl_b32", s(sT0), s(sT0), 7)
            A.salu("s_add_u32", s(sT0), s(sT0), hex(L_RB))
            A.valu("v_lshl_add_u32", v(vT0), v(vR31), 2, s(sT0))
            A.dsr("ds_read_b32", v(vRs2), v(vT0))
            red_addrs(0)
    assert not dq and not pre
    ST("dm")
    for r in (3, 2, 1, 0):
        aa, bb = r >> 1, r & 1
        blk = acc + 16 * r
        for pos in range(28 - NL, 28):
            A.mfma32(v(blk, 16), a(8 * pos + 4 * bb, 4), v(vD + 8 * (pos % WIN) + 4 * aa, 4), v(blk, 16))
        if r < 3:
            red_write(r + 1)
    red_finish(32)
    for i in range(16):
        A.valu("v_fma_f32", v(vHB + i), v(acc + i), v(vRs2), v(vHB + i))
    for i in range(8):
        A.valu("v_cvt_pk_bf16_f32", v(acc + 16 + i), v(vHB + 2 * i), v(vHB + 2 * i + 1))
    o = acc + 16
    for qp in range(2):
        A.permlane32_swap(v(o + 4 * qp), v(o + 4 * qp + 2))
        A.permlane32_swap(v(o + 4 * qp + 1), v(o + 4 * qp + 3))
    A.valu("v_lshl_add_u32", v(vT0), v(vHH), 3, v(vT5))
    for qp in range(2):
        A.bstore("buffer_store_dwordx4", v(o + 4 * qp, 4), v(vT0), s(sOUT, 4), s(sColB), offset=32 * qp, mods={0: "", 1: "sc1", 2: "nt"}[opt.get("ostm", 0)])
    stamp_flush(A, opt, 1, sWS, sWv, 32, vT4, sT0)
    A.label("K2_DONE")
    A.misc("s_endpgm")
    A.label("K2_END")
    return A.text(), LDS_BYTES


HEADER = """; Kernarg layout for this problem (88 bytes, ptrs only, base s[0:1]):
"""


def kd(name, nv, acc_off, ns=102):
    return f""".amdhsa_kernel {name}
  .amdhsa_next_free_vgpr {nv}
  .amdhsa_next_free_sgpr {ns}
  .amdhsa_accum_offset {acc_off}
  .amdhsa_group_segment_fixed_size 0
  .amdhsa_kernarg_size 88
  .amdhsa_user_sgpr_count 2
  .amdhsa_user_sgpr_kernarg_segment_ptr 1
  .amdhsa_system_sgpr_workgroup_id_x 1
  .amdhsa_float_denorm_mode_32 3
.end_amdhsa_kernel
"""


def gen_touch(opt):
    A = Asm()
    A.raw(".globl t_kernel")
    A.raw(".p2align 8")
    A.raw(".type t_kernel,@function")
    A.raw("t_kernel:")
    A.sload("s_load_dwordx16", s(4, 16), s(0, 2), 0)
    A.salu("s_lshl_b32", "s3", "s2", 13)
    A.valu("v_lshlrev_b32", "v1", 4, "v0")
    A.valu("v_add_u32", "v1", "s3", "v1")
    r = 4
    for base, size in ((4, 2048 * 896), (6, 448 * 2688), (8, 448 * 896), (12, 448 * 3584), (16, 1792 * 896)):
        make_srd(A, 28, base, size)
        A.bload("buffer_load_dwordx4", v(r, 4), "v1", s(28, 4), 0)
        A.salu("s_movk_i32", "s3", 4096)
        A.bload("buffer_load_dwordx4", v(r + 4, 4), "v1", s(28, 4), "s3")
        r += 8
    A.waitcnt(vm=0)
    A.misc("s_endpgm")
    return A.text()


def build(opt):
    k1, l1 = gen_k1(opt)
    k2, l2 = gen_k2(opt)
    out = HEADER
    if opt.get("touch"):
        out += "; @launch kernel=t_kernel grid=(256,1,1) block=(256,1,1) lds=0\n"
    for _ in range(1 + opt.get("k1x", 0)):
        out += f"; @launch kernel=k1_kernel grid=(256,1,1) block=(768,1,1) lds={l1}\n"
    out += f"; @launch kernel=k2_kernel grid=(224,1,1) block=(256,1,1) lds={l2}\n"
    out += '.amdgcn_target "amdgcn-amd-amdhsa--gfx950"\n.text\n'
    out += k1 + k2
    if opt.get("touch"):
        out += gen_touch(opt)
    out += '.section .rodata,"a"\n.p2align 6\n'
    out += kd("k1_kernel", 168, 168)
    out += ".p2align 6\n"
    out += kd("k2_kernel", 512, 256)
    if opt.get("touch"):
        out += ".p2align 6\n" + kd("t_kernel", 64, 64)
    return out


if __name__ == "__main__":
    opt = {}
    outp = f"cdna_kernels/{NAME}.s"
    for arg in sys.argv[1:]:
        if arg.startswith("-o"):
            outp = arg[2:]
        else:
            k, val = arg.split("=")
            opt[k] = int(val)
    open(outp, "w").write(build(opt))
    print("wrote", outp)
```

```python
import math
import struct
import sys
import os

sys.path.insert(0, os.path.dirname(os.path.abspath(__file__)))
from asmlib import Asm, v, a, s

NAME = "sequential_preLN__linear_attn_block__dense_activation_gelu__prompt"

WS_KV = 0
WS_FLAGS = 0x10000
WS_HST = 0x28000
WS_WO = 0x60000
WS_W1 = 0xD0000
WS_W2 = WS_W1 + 56 * 29 * 1024
WS_PQ = WS_W2 + 14 * 112 * 1024
WS_H = WS_PQ + 64 * 32 * 1024
WS_H1 = WS_H + 64 * 28 * 1024
WS_XF = WS_H1 + 64 * 112 * 1024
WS_STAMP = WS_XF + 64 * 28 * 1024
WS_END = WS_STAMP + 2 * 256 * 8 * 16 * 8
OOB = 0x7F000000

LOG2E = 1.4426950408889634
GC1 = -2.0 * math.sqrt(2.0 / math.pi) * LOG2E
GC2 = GC1 * 0.044715


def f32(x):
    return "0x%08x" % struct.unpack("<I", struct.pack("<f", x))[0]


def make_srd(A, d, b, size):
    A.salu("s_mov_b32", s(d), s(b))
    A.salu("s_and_b32", s(d + 1), s(b + 1), "0xffff")
    A.salu("s_mov_b32", s(d + 2), size if isinstance(size, str) else hex(size))
    A.salu("s_mov_b32", s(d + 3), "0x00020000")


def bcast_hi(A, dst, src, tmp):
    A.valu("v_mov_b32", tmp, src)
    A.valu("v_mov_b32", dst, src)
    A.permlane32_swap(tmp, dst)


def sum_halves(A, dst, src, tmp):
    A.valu("v_mov_b32", tmp, src)
    A.valu("v_mov_b32", dst, src)
    A.permlane32_swap(tmp, dst)
    A.valu("v_add_f32", dst, dst, tmp)


def stamp(A, opt, idx):
    if not opt.get("stamps") or idx is None:
        return
    assert 0 <= idx < 8
    A.misc(f"s_memrealtime s[{84 + 2 * idx}:{85 + 2 * idx}]")


def stamp_flush(A, opt, kern, sWS, sWv, vt, va, stmp):
    if not opt.get("stamps"):
        return
    A.waitcnt(vm=0, lg=0)
    A.misc("s_memrealtime s[100:101]")
    A.misc("s_waitcnt lgkmcnt(0)")
    A.salu("s_lshl_b32", s(stmp), "s2", 3)
    A.salu("s_add_u32", s(stmp), s(stmp), s(sWv))
    A.salu("s_lshl_b32", s(stmp), s(stmp), 7)
    A.salu("s_add_u32", s(stmp), s(stmp), hex(WS_STAMP + kern * 256 * 8 * 128))
    A.valu("v_mov_b32", v(va), 0)
    for idx in range(9):
        A.valu("v_mov_b32", v(vt + 2 * idx), f"s{84 + 2 * idx}")
        A.valu("v_mov_b32", v(vt + 2 * idx + 1), f"s{85 + 2 * idx}")
        A.bstore("buffer_store_dwordx2", v(vt + 2 * idx, 2), v(va), s(sWS, 4), s(stmp), offset=8 * idx)


def pop(q, n=1):
    for _ in range(n):
        if q:
            q.pop(0)()


def gen_k1(opt):
    A = Asm()
    KN = "k1_kernel"
    STM = {0: "", 1: "sc1", 2: "nt", 3: "sc0 sc1"}[opt.get("stm", 1)]
    XB = 1040
    XW = 4 * XB
    WOFF = 4 * XW
    SLOT = WOFF + 12288
    NSLOT = 4
    L_RP = NSLOT * SLOT
    L_SCR = L_RP + 16384
    L_CS2 = L_SCR
    L_RS = L_SCR + 1536
    L_XE = L_SCR + 2048
    L_CS1 = L_SCR + 3072
    LDS_BYTES = L_CS1 + 1024

    sX, sW, sWS, sDBG, sRP, sB1 = 28, 32, 36, 40, 44, 48
    sWv, sRb, sH, sKc, sT0, sT1, sT2, sT3 = 52, 53, 54, 55, 56, 57, 58, 59
    sXo, sWo = 60, 61
    sRS0, sRSTEP, sCls, sRRS, sP0, sKh, sCt = 62, 63, 64, 65, 66, 67, 68
    sHq = 69
    sPC = 70
    sMx, sMw = 72, 73
    sC_eps6 = 74
    sC_l2e = 76
    sU, sUp, sI, sW4 = 78, 79, 80, 81
    sCnt, sM4 = 82, 83
    sWall = 27

    A.raw(f".globl {KN}")
    A.raw(".p2align 8")
    A.raw(f".type {KN},@function")
    A.raw(f"{KN}:")
    A.scmp("s_cmp_ge_u32", "s2", 256)
    A.misc("s_cbranch_scc1 K1_DONE")
    SM = {"b0": 1, "b2": 2, "b6": 3, "loop": 4, "e1": 5, "e2": 6, "at": 7}
    if opt.get("stamps") == 4:
        SM = {"b0": 1, "loop": 2}
    if opt.get("stamps") == 5:
        SM = {"pre0": 1, "pre1": 2, "pre2": 3, "b0": 4, "b1": 5}
    ST = lambda k: stamp(A, opt, SM.get(k))
    stamp(A, opt, 0)
    A.sload("s_load_dwordx16", s(4, 16), s(0, 2), 0)
    A.sload("s_load_dwordx4", s(20, 4), s(0, 2), 64)
    A.sload("s_load_dwordx2", s(24, 2), s(0, 2), 80)

    vL, vT0, vT1, vT2, vT3, vT4, vT5 = 1, 2, 3, 4, 5, 6, 7
    vXo = 8
    vWo = 12
    vRPo = 15
    vXa = 16
    vWa = 24
    vPad = 32
    vOnes2 = 34
    vSel = 36
    vRPa = 40
    vL16 = 41
    vB1 = 42
    vFlag = 43
    vZero = 44
    vXF = 48
    vWF = 56
    acc0, acc1 = 72, 88
    accSS = 88
    accCS = 104
    accRC = 48
    vRF = 52
    vR = 48
    vE = 112
    vP = 136

    A.valu("v_and_b32", v(vL), 63, "v0")
    A.valu("v_lshrrev_b32", v(vT0), 6, "v0")
    A.readfirstlane(s(sWall), v(vT0))
    A.salu("s_and_b32", s(sWv), s(sWall), 3)
    A.salu("s_sub_u32", s(26), s(sWall), 4)
    A.salu("s_and_b32", s(sT0), "s2", 7)
    A.salu("s_lshr_b32", s(sT1), "s2", 3)
    A.salu("s_lshl_b32", s(sT2), s(sT0), 1)
    A.salu("s_and_b32", s(sT3), s(sT1), 1)
    A.salu("s_add_u32", s(sRb), s(sT2), s(sT3))
    A.salu("s_lshr_b32", s(sH), s(sT1), 1)
    A.salu("s_lshr_b32", s(sKc), s(sH), 1)
    A.salu("s_mul_i32", s(sKc), s(sKc), opt.get("ca", 1))
    A.salu("s_mul_i32", s(sT3), s(sT3), opt.get("cb", 3))
    A.salu("s_add_u32", s(sKc), s(sKc), s(sT3))
    A.salu("s_mul_i32", s(sT0), s(sKc), 37)
    A.salu("s_lshr_b32", s(sT0), s(sT0), 8)
    A.salu("s_mul_i32", s(sT0), s(sT0), 7)
    A.salu("s_sub_u32", s(sKc), s(sKc), s(sT0))
    A.salu("s_xor_b32", s(sHq), s(sH), 1)
    A.salu("s_mul_i32", s(sMx), s(sWv), XW)
    A.salu("s_mul_i32", s(sMw), s(sWv), 3072)
    A.salu("s_add_u32", s(sMw), s(sMw), WOFF)
    A.salu("s_lshl_b32", s(sM4), s(sWv), 12)
    A.valu("v_lshlrev_b32", v(vL16), 4, v(vL))

    def lds_addrs():
        A.valu("v_and_b32", v(vT0), 31, v(vL))
        A.valu("v_lshrrev_b32", v(vT1), 5, v(vL))
        A.valu("v_lshrrev_b32", v(vT2), 3, v(vT0))
        A.valu("v_mul_u32_u24", v(vT2), XB, v(vT2))
        A.valu("v_and_b32", v(vT3), 7, v(vT0))
        A.valu("v_lshl_add_u32", v(vT2), v(vT3), 7, v(vT2))
        A.valu("v_lshl_add_u32", v(vT2), v(vT1), 4, v(vT2))
        A.valu("v_add_u32", v(vT2), s(sMx), v(vT2))
        A.valu("v_bfe_u32", v(vT3), v(vT0), 1, 1)
        for p in range(4):
            A.salu("s_add_u32", s(sT0), s(sWv), p)
            A.salu("s_bfe_u32", s(sT1), s(sT0), "0x10001")
            A.salu("s_and_b32", s(sT0), s(sT0), 1)
            A.salu("s_lshl_b32", s(sT0), s(sT0), 5)
            A.valu("v_xor_b32", v(vT4), s(sT1), v(vT3))
            A.valu("v_lshl_add_u32", v(vT4), v(vT4), 6, v(vT2))
            A.valu("v_add_u32", v(vXa + p), s(sT0), v(vT4))
            A.valu("v_add_u32", v(vXa + 4 + p), hex(2 * SLOT), v(vXa + p))
        A.valu("v_bfe_u32", v(vT2), v(vL), 2, 2)
        A.valu("v_lshl_add_u32", v(vT2), v(vT1), 3, v(vT2))
        A.valu("v_mul_u32_u24", v(vT2), 192, v(vT2))
        A.valu("v_bfe_u32", v(vT3), v(vL), 4, 1)
        A.valu("v_lshl_add_u32", v(vT2), v(vT3), 5, v(vT2))
        A.valu("v_and_b32", v(vT4), 3, v(vL))
        A.valu("v_lshl_add_u32", v(vT2), v(vT4), 3, v(vT2))
        for p in range(4):
            A.salu("s_add_u32", s(sT0), s(sWv), p)
            A.salu("s_and_b32", s(sT0), s(sT0), 3)
            A.salu("s_mul_i32", s(sT0), s(sT0), 3072)
            A.salu("s_add_u32", s(sT0), s(sT0), WOFF)
            A.valu("v_add_u32", v(vWa + p), s(sT0), v(vT2))
            A.valu("v_add_u32", v(vWa + 4 + p), hex(2 * SLOT), v(vWa + p))
        A.valu("v_mov_b32", v(vOnes2), "0x3f803f80")
        A.valu("v_mov_b32", v(vOnes2 + 1), "0x3f803f80")
        A.valu("v_and_b32", v(vT2), 1, v(vL))
        A.cmp("v_cmp_eq_u32", "vcc", v(vT2), v(vT3))
        for i in range(4):
            A.cndmask(v(vSel + i), 0, v(vOnes2))
        A.salu("s_mov_b32", s(sC_eps6), f32(1e-6))
        A.salu("s_mov_b32", s(sC_eps6 + 1), f32(1e-6))
        A.salu("s_mov_b32", s(sC_l2e), f32(LOG2E))
        A.salu("s_mov_b32", s(sC_l2e + 1), f32(LOG2E))

    def read_ops(it, p, buf, segs):
        st = (it % NSLOT) // 2
        off = ((it % NSLOT) % 2) * SLOT
        ops = [lambda: A.dsr("ds_read_b128", v(vXF + 4 * buf, 4), v(vXa + 4 * st + p), offset=off)]
        for k, seg in enumerate(segs):
            ops.append(lambda k=k, seg=seg: A.dsr("ds_read_b64_tr_b16", v(vWF + 8 * buf + 4 * k, 2), v(vWa + 4 * st + p), offset=off + seg * 64))
            ops.append(lambda k=k, seg=seg: A.dsr("ds_read_b64_tr_b16", v(vWF + 8 * buf + 4 * k + 2, 2), v(vWa + 4 * st + p), offset=off + seg * 64 + 768))
        return ops

    def colsum_write(segs):
        A.valu("v_bfe_u32", v(vT3), v(vL), 4, 1)
        A.cmp("v_cmp_eq_u32", "vcc", 1, v(vT3))
        A.valu("v_and_b32", v(vT0), 31, v(vL))
        A.valu("v_mul_u32_u24", v(vT4), 48, v(vT0))
        A.salu("s_lshl_b32", s(sT0), s(sWv), 2)
        A.salu("s_add_u32", s(sT0), s(sT0), hex(L_CS2))
        A.valu("v_add_u32", v(vT2), s(sT0), v(vT4))
        A.valu("v_add_u32", v(vT4), hex(L_CS2), v(vT4))
        for k, seg in enumerate(segs):
            A.cndmask(v(vE + k), v(accCS + 4 * k), v(accCS + 4 * k + 1))
            A.dsw("ds_write_b32", v(vT2), v(vE + k), offset=16 * seg)

    def we_frag(c, dst):
        A.valu("v_add_f32", v(c), v(c), v(c + 1))
        A.valu("v_add_f32", v(c + 2), v(c + 2), v(c + 3))
        A.valu("v_add_f32", v(c), v(c), v(c + 2))
        A.cndmask(v(c), 0, v(c))
        A.valu("v_cvt_pk_bf16_f32", v(dst + 1), v(c), 0)
        A.valu("v_lshlrev_b32", v(c + 2), 16, v(dst + 1))
        A.valu("v_sub_f32", v(c + 2), v(c), v(c + 2))
        A.valu("v_cvt_pk_bf16_f32", v(dst), v(c), v(c + 2))
        A.valu("v_mov_b32", v(dst + 2), 0)
        A.valu("v_mov_b32", v(dst + 3), 0)

    def phi_pack(acc, rs_pair, dstbase):
        for i in range(0, 16, 2):
            A.valu("v_pk_fma_f32", v(acc + i, 2), v(acc + i, 2), rs_pair(i), s(sC_eps6, 2))
        for i in range(0, 16, 2):
            A.valu("v_pk_mul_f32", v(vP + i, 2), v(acc + i, 2), s(sC_l2e, 2))
        for i in range(16):
            A.valu("v_exp_f32", v(vP + i), v(vP + i), mods="clamp")
            A.valu("v_max_f32", v(acc + i), s(sC_eps6), v(acc + i))
        for i in range(0, 16, 2):
            A.valu("v_pk_add_f32", v(acc + i, 2), v(acc + i, 2), v(vP + i, 2))
        for i in range(0, 16, 2):
            A.valu("v_cvt_pk_bf16_f32", v(dstbase + i // 2), v(acc + i), v(acc + i + 1))

    accRC, vRF = 48, 52
    sDst, sSrc, sExt, sB1o, sKhm, sPs, sG1 = 4, 8, 9, 10, 11, 12, 20
    vRa, vRb, vB1o, vExo = vE, vE + 1, vE + 2, vE + 3

    def rp_u0():
        make_srd(A, sB1, 14, 1792 * 2)
        A.salu("s_lshl_b32", s(sUp), s(sRb), 4)
        A.salu("s_add_u32", s(sUp), s(sUp), s(sH))
        A.salu("s_lshr_b32", s(sUp), s(sUp), 1)
        A.salu("s_mov_b32", s(sCls), 2)
        A.scmp("s_cmp_lt_u32", s(sUp), 112)
        A.salu("s_cselect_b32", s(sCls), 1, s(sCls))
        A.scmp("s_cmp_lt_u32", s(sUp), 56)
        A.salu("s_cselect_b32", s(sCls), 0, s(sCls))
        A.salu("s_mov_b32", s(sRP), "s8")
        A.salu("s_mov_b32", s(sRP + 1), "s9")
        A.salu("s_mov_b32", s(sRP + 2), hex(448 * 896))
        A.salu("s_movk_i32", s(sRSTEP), 64)
        A.salu("s_movk_i32", s(sRRS), 896)
        A.scmp("s_cmp_eq_u32", s(sCls), 1)
        A.salu("s_cselect_b32", s(sRP), "s16", s(sRP))
        A.salu("s_cselect_b32", s(sRP + 1), "s17", s(sRP + 1))
        A.salu("s_cselect_b32", s(sRP + 2), hex(1792 * 896), s(sRP + 2))
        A.salu("s_cselect_b32", s(sRSTEP), hex(16 * 896), s(sRSTEP))
        A.scmp("s_cmp_eq_u32", s(sCls), 0)
        A.salu("s_cselect_b32", s(sRP), "s12", s(sRP))
        A.salu("s_cselect_b32", s(sRP + 1), "s13", s(sRP + 1))
        A.salu("s_cselect_b32", s(sRP + 2), hex(448 * 3584), s(sRP + 2))
        A.salu("s_cselect_b32", s(sRSTEP), hex(16 * 3584), s(sRSTEP))
        A.salu("s_cselect_b32", s(sRRS), hex(3584), s(sRRS))
        A.salu("s_and_b32", s(sRP + 1), s(sRP + 1), "0xffff")
        A.salu("s_mov_b32", s(sRP + 3), "0x00020000")
        A.salu("s_and_b32", s(sPs), s(sH), 1)

    def rp_u1():
        A.salu("s_sub_u32", s(sCt), s(sUp), 112)
        A.salu("s_mov_b32", s(sKh), s(sPs))
        A.salu("s_mul_i32", s(sRS0), s(sCt), 28 * 896)
        A.salu("s_mul_i32", s(sT0), s(sPs), 16 * 896)
        A.salu("s_add_u32", s(sRS0), s(sRS0), s(sT0))
        A.salu("s_sub_u32", s(sT0), s(sUp), 56)
        A.salu("s_lshr_b32", s(sT1), s(sT0), 3)
        A.salu("s_lshl_b32", s(sT1), s(sT1), 1)
        A.salu("s_add_u32", s(sT1), s(sT1), s(sPs))
        A.salu("s_and_b32", s(sT0), s(sT0), 7)
        A.salu("s_mul_i32", s(sT2), s(sT0), 224 * 896)
        A.salu("s_lshl_b32", s(sT3), s(sT1), 6)
        A.salu("s_add_u32", s(sT2), s(sT2), s(sT3))
        A.scmp("s_cmp_eq_u32", s(sCls), 1)
        A.salu("s_cselect_b32", s(sCt), s(sT1), s(sCt))
        A.salu("s_cselect_b32", s(sKh), s(sT0), s(sKh))
        A.salu("s_cselect_b32", s(sRS0), s(sT2), s(sRS0))
        A.salu("s_lshr_b32", s(sT1), s(sUp), 1)
        A.salu("s_lshl_b32", s(sT1), s(sT1), 1)
        A.salu("s_add_u32", s(sT1), s(sT1), s(sPs))
        A.salu("s_and_b32", s(sT0), s(sUp), 1)
        A.salu("s_mul_i32", s(sT2), s(sT0), 224 * 3584)
        A.salu("s_lshl_b32", s(sT3), s(sT1), 6)
        A.salu("s_add_u32", s(sT2), s(sT2), s(sT3))
        A.scmp("s_cmp_eq_u32", s(sCls), 0)
        A.salu("s_cselect_b32", s(sCt), s(sT1), s(sCt))
        A.salu("s_cselect_b32", s(sKh), s(sT0), s(sKh))
        A.salu("s_cselect_b32", s(sRS0), s(sT2), s(sRS0))
        A.salu("s_mul_i32", s(sT0), s(sWv), s(sRSTEP))
        A.salu("s_add_u32", s(sSrc), s(sT0), s(sRS0))
        A.salu("s_lshl_b32", s(sB1o), s(sCt), 6)
        A.salu("s_mul_i32", s(sT0), s(sCt), 29 * 1024)
        A.salu("s_add_u32", s(sT0), s(sT0), hex(WS_W1 + 28 * 1024))
        A.scmp("s_cmp_eq_u32", s(sCls), 0)
        A.salu("s_cselect_b32", s(sExt), s(sT0), hex(OOB))
        A.salu("s_lshl_b32", s(sRSTEP), s(sRSTEP), 2)

    def rp_dst(n):
        A.salu("s_add_u32", s(sI), s(sWv), 4 * n)
        A.salu("s_lshr_b32", s(sT0), s(sI), 1)
        A.salu("s_lshl_b32", s(sT0), s(sT0), 6)
        A.salu("s_lshl_b32", s(sT1), s(sCt), 2)
        A.salu("s_add_u32", s(sT0), s(sT0), s(sT1))
        A.salu("s_lshl_b32", s(sT1), s(sKh), 1)
        A.salu("s_add_u32", s(sT0), s(sT0), s(sT1))
        A.salu("s_lshr_b32", s(sT1), s(sCt), 2)
        A.salu("s_xor_b32", s(sT1), s(sT1), s(sI))
        A.salu("s_and_b32", s(sT1), s(sT1), 1)
        A.salu("s_add_u32", s(sT0), s(sT0), s(sT1))
        A.salu("s_add_u32", s(sT0), s(sT0), WS_WO >> 10)
        A.salu("s_mul_i32", s(sP0), s(sKh), 14)
        A.salu("s_add_u32", s(sP0), s(sP0), s(sI))
        A.salu("s_lshr_b32", s(sT1), s(sCt), 1)
        A.salu("s_lshl_b32", s(sT1), s(sT1), 2)
        A.salu("s_and_b32", s(sT2), s(sP0), 3)
        A.salu("s_add_u32", s(sT1), s(sT1), s(sT2))
        A.salu("s_mul_i32", s(sT1), s(sT1), 28)
        A.salu("s_lshr_b32", s(sT2), s(sP0), 3)
        A.salu("s_add_u32", s(sT1), s(sT1), s(sT2))
        A.salu("s_bfe_u32", s(sT2), s(sP0), "0x10002")
        A.salu("s_mul_i32", s(sT2), s(sT2), 14)
        A.salu("s_add_u32", s(sT1), s(sT1), s(sT2))
        A.salu("s_lshl_b32", s(sT1), s(sT1), 1)
        A.salu("s_xor_b32", s(sT2), s(sCt), s(sP0))
        A.salu("s_and_b32", s(sT2), s(sT2), 1)
        A.salu("s_add_u32", s(sT1), s(sT1), s(sT2))
        A.salu("s_add_u32", s(sT1), s(sT1), WS_W2 >> 10)
        A.scmp("s_cmp_eq_u32", s(sCls), 1)
        A.salu("s_cselect_b32", s(sT0), s(sT1), s(sT0))
        A.salu("s_mul_i32", s(sT1), s(sCt), 29)
        A.salu("s_add_u32", s(sT1), s(sT1), s(sP0))
        A.salu("s_add_u32", s(sT1), s(sT1), WS_W1 >> 10)
        A.scmp("s_cmp_eq_u32", s(sCls), 0)
        A.salu("s_cselect_b32", s(sT0), s(sT1), s(sT0))
        A.salu("s_lshl_b32", s(sDst + n), s(sT0), 10)
        if n == 3:
            A.scmp("s_cmp_lt_u32", s(sWv), 2)
            A.salu("s_cselect_b32", s(sDst + n), s(sDst + n), hex(OOB))

    def rp_vec():
        A.valu("v_lshrrev_b32", v(vT1), 5, v(vL))
        A.valu("v_bfe_u32", v(vT3), v(vL), 4, 1)
        A.valu("v_and_b32", v(vT4), 3, v(vL))
        A.valu("v_bfe_u32", v(vT2), v(vL), 2, 2)
        A.valu("v_lshl_add_u32", v(vT2), v(vT1), 2, v(vT2))
        A.valu("v_lshlrev_b32", v(vT2), 6, v(vT2))
        A.valu("v_lshl_add_u32", v(vT2), v(vT3), 5, v(vT2))
        A.valu("v_lshl_add_u32", v(vT2), v(vT4), 3, v(vT2))
        A.salu("s_add_u32", s(sT0), s(sM4), hex(L_RP))
        A.valu("v_add_u32", v(vRPa), s(sT0), v(vT2))
        A.cmp("v_cmp_eq_u32", s(sG1, 2), 1, v(vT3))
        A.valu("v_lshrrev_b32", v(vT0), 2, v(vL))
        A.valu("v_mul_lo_u32", v(vT3), v(vT0), s(sRRS))
        A.valu("v_lshl_add_u32", v(vT3), v(vT4), 4, v(vT3))
        A.salu("s_lshl_b32", s(sT0), s(sCls), 1)
        A.salu("s_add_u32", s(sT0), s(sT0), s(sPs))
        A.scmp("s_cmp_eq_u32", s(sT0), 5)
        A.salu("s_cselect_b32", s(sT3), 12, 64)
        A.cmp("v_cmp_gt_u32", "vcc", s(sT3), v(vT0))
        A.valu("v_mov_b32", v(vT2), hex(OOB))
        A.cndmask(v(vRPo), v(vT2), v(vT3))
        A.valu("v_and_b32", v(vT0), 31, v(vL))
        A.valu("v_lshlrev_b32", v(vB1o), 1, v(vT0))
        A.valu("v_lshlrev_b32", v(vT4), 2, v(vT0))
        A.valu("v_add_u32", v(vRb), hex(L_CS1), v(vT4))
        A.valu("v_mov_b32", v(vRa), hex(L_CS1 + 128))
        A.cmp("v_cmp_eq_u32", "vcc", s(sKh), v(vT1))
        A.cndmask(v(vExo), v(vT2), v(vL16))
        A.scmp("s_cmp_eq_u32", s(sKh), 0)
        A.salu("s_cselect_b32", s(sKhm), -1, 0)

    rp_tok = []

    def rp_dma():
        for i in range(4):
            if i == 3:
                A.scmp("s_cmp_lt_u32", s(sWv), 2)
                A.salu("s_cselect_b32", s(sSrc), s(sSrc), hex(OOB))
            A.salu("s_add_u32", "m0", s(sM4), hex(L_RP + i * 1024))
            rp_tok.append(A.dma(v(vRPo), s(sRP, 4), s(sSrc)))
            if i < 3:
                A.salu("s_add_u32", s(sSrc), s(sSrc), s(sRSTEP))

    def rp_part1(wait=True):
        if wait:
            A.wait_vm_token(rp_tok[3])
        for i in range(4):
            A.dsr("ds_read_b64_tr_b16", v(vRF + 4 * i, 2), v(vRPa), offset=i * 1024)
            A.dsr("ds_read_b64_tr_b16", v(vRF + 4 * i + 2, 2), v(vRPa), offset=i * 1024 + 512)
        for i in range(4):
            A.bstore("buffer_store_dwordx4", v(vRF + 4 * i, 4), v(vL16), s(sWS, 4), s(sDst + i), mods=STM)
            A.mfma("v_mfma_f32_16x16x32_bf16", v(accRC, 4), v(vSel, 4), v(vRF + 4 * i, 4), 0 if i == 0 else v(accRC, 4))
        A.cndmask(v(vT2), v(accRC), v(accRC + 1), s(sG1, 2))
        A.salu("s_mov_b32", "exec_hi", 0)
        A.dsw("ds_add_f32", v(vRb), v(vT2))
        A.valu("v_mov_b32", v(vT3), 1)
        A.waitcnt(lg=0)
        A.salu("s_mov_b64", "exec", 1)
        A.dsr("ds_add_rtn_u32", v(vT1), v(vRa) + ", " + v(vT3), mods="")
        A.salu("s_mov_b64", "exec", -1)
        A.readfirstlane(s(sT1), v(vT1))
        A.scmp("s_cmp_eq_u32", s(sT1), 3)
        A.salu("s_cselect_b32", s(sExt), s(sExt), hex(OOB))

    def rp_part2():
        e = vE + 4
        A.dsr("ds_read_b32", v(e), v(vRb))
        A.valu("v_lshlrev_b32", v(e + 7), 16, v(vB1))
        A.valu("v_and_b32", v(e + 7), s(sKhm), v(e + 7))
        A.valu("v_cvt_pk_bf16_f32", v(e + 1), v(e), v(e))
        A.valu("v_lshlrev_b32", v(e + 1), 16, v(e + 1))
        A.valu("v_sub_f32", v(e + 1), v(e), v(e + 1))
        A.valu("v_cvt_pk_bf16_f32", v(e + 4), v(e), v(e + 1))
        A.valu("v_cvt_pk_bf16_f32", v(e + 5), v(e), v(e + 7))
        A.valu("v_lshrrev_b32", v(e + 6), 16, v(e + 7))
        A.valu("v_mov_b32", v(e + 7), 0)
        A.bstore("buffer_store_dwordx4", v(e + 4, 4), v(vExo), s(sWS, 4), s(sExt), mods=STM)

    A.scmp("s_cmp_ge_u32", s(sWall), 8)
    A.misc("s_cbranch_scc1 K1_TEAM_Q")
    A.scmp("s_cmp_ge_u32", s(sWall), 4)
    A.misc("s_cbranch_scc1 K1_TEAM_KV")
    saved = (list(A.vm), list(A.lg), set(A.smem_pending))
    if opt.get("lprio", 1):
        A.misc("s_setprio 3")

    A.salu("s_lshl_b32", s(sT0), s(sRb), 7)
    A.salu("s_lshl_b32", s(sT1), s(sWv), 5)
    A.salu("s_add_u32", s(sT0), s(sT0), s(sT1))
    A.salu("s_movk_i32", s(sT1), 896)
    A.valu("v_lshrrev_b32", v(vT0), 3, v(vL))
    A.valu("v_bfe_u32", v(vT1), v(vL), 2, 1)
    A.valu("v_bfe_u32", v(vT3), v(vL), 4, 1)
    A.valu("v_xor_b32", v(vT1), v(vT1), v(vT3))
    A.valu("v_and_b32", v(vT3), 3, v(vL))
    A.valu("v_lshl_add_u32", v(vT3), v(vT1), 2, v(vT3))
    A.valu("v_add_u32", v(vT2), s(sT0), v(vT0))
    A.valu("v_mul_lo_u32", v(vT2), v(vT2), s(sT1))
    A.valu("v_lshl_add_u32", v(vXo), v(vT3), 4, v(vT2))
    for b in range(1, 4):
        A.valu("v_add_u32", v(vXo + b), (8 * 896 - XB) * b, v(vXo))
    A.salu("s_mul_i32", s(sT2), s(sWv), 16 * 2688)
    A.salu("s_mul_i32", s(sT0), s(sH), 56)
    A.salu("s_add_u32", s(sT0), s(sT0), s(sT2))
    A.salu("s_mul_i32", s(sT3), s(sHq), 56)
    A.salu("s_add_u32", s(sT3), s(sT3), s(sT2))
    A.valu("v_mov_b32", v(vT0), s(sT0))
    A.valu("v_mov_b32", v(vT1), s(sT3))
    A.salu("s_movk_i32", s(sT2), 2688)
    for j in range(3):
        A.valu("v_add_u32", v(vT2), 64 * j, v(vL))
        A.valu("v_mul_u32_u24", v(vT3), 43691, v(vT2))
        A.valu("v_lshrrev_b32", v(vT3), 19, v(vT3))
        A.valu("v_mul_u32_u24", v(vT4), 12, v(vT3))
        A.valu("v_sub_u32", v(vT2), v(vT2), v(vT4))
        A.valu("v_mul_lo_u32", v(vT3), v(vT3), s(sT2))
        A.cmp("v_cmp_gt_u32", "vcc", 4, v(vT2))
        A.valu("v_lshrrev_b32", v(vT4), 2, v(vT2))
        A.valu("v_mul_lo_u32", v(vT4), v(vT4), s(sT1))
        A.valu("v_and_b32", v(vT2), 3, v(vT2))
        A.valu("v_lshl_add_u32", v(vT3), v(vT2), 4, v(vT3))
        A.cndmask(v(vT2), v(vT0), v(vT1))
        A.valu("v_add3_u32", v(vT3), v(vT3), v(vT4), v(vT2))
        if j:
            A.valu("v_subrev_u32", v(vWo + j), 1024 * j, v(vT3))
        else:
            A.valu("v_mov_b32", v(vWo + j), v(vT3))
    make_srd(A, sX, 4, 2048 * 896)
    make_srd(A, sW, 6, 448 * 2688)
    make_srd(A, sWS, 24, WS_END)
    chunk_tok = {}

    def chunk_ops(it):
        slot = (it % NSLOT) * SLOT
        ops = []

        def x_op(b):
            if b == 0:
                A.salu("s_lshl_b32", s(sXo), s(sKc), 7)
                A.salu("s_mul_i32", s(sWo), s(sKc), 64 * 2688)
                if opt.get("abl") in (2, 4):
                    A.salu("s_mov_b32", s(sXo), hex(OOB))
                if opt.get("abl") in (2, 3):
                    A.salu("s_mov_b32", s(sWo), hex(OOB))
                A.salu("s_add_u32", "m0", s(sMx), hex(slot))
            A.dma(v(vXo + b), s(sX, 4), s(sXo), offset=XB * b)

        def w_op(j):
            if j == 0:
                A.salu("s_add_u32", "m0", s(sMw), hex(slot))
            tk = A.dma(v(vWo + j), s(sW, 4), s(sWo), offset=1024 * j)
            if j == 2:
                chunk_tok[it] = tk
                A.salu("s_add_u32", s(sKc), s(sKc), 1)
                A.scmp("s_cmp_eq_u32", s(sKc), 7)
                A.salu("s_cselect_b32", s(sKc), 0, s(sKc))
        for b in range(4):
            ops.append(lambda b=b: x_op(b))
        for j in range(3):
            ops.append(lambda j=j: w_op(j))
        return ops

    NPRE = opt.get("k1_pre", 2)
    for it in range(NPRE):
        for op in chunk_ops(it):
            op()
    A.valu("v_and_b32", v(vT2), 15, v(vL))
    A.valu("v_mul_u32_u24", v(vT2), 192, v(vT2))
    A.salu("s_add_u32", s(sT0), s(sMw), 56)
    A.valu("v_add_u32", v(vPad), s(sT0), v(vT2))
    A.valu("v_add_u32", v(vPad + 1), hex(2 * SLOT), v(vPad))
    A.valu("v_mov_b32", v(vOnes2), "0x3f803f80")
    A.valu("v_mov_b32", v(vOnes2 + 1), "0x3f803f80")
    A.valu("v_lshrrev_b32", v(vT1), 5, v(vL))
    A.valu("v_bfe_u32", v(vT3), v(vL), 4, 1)
    A.valu("v_and_b32", v(vT4), 3, v(vL))
    A.valu("v_and_b32", v(vT2), 1, v(vL))
    A.cmp("v_cmp_eq_u32", "vcc", v(vT2), v(vT3))
    for i in range(4):
        A.cndmask(v(vSel + i), 0, v(vOnes2))

    def l_ready(it):
        A.wait_vm_token(chunk_tok[it])
        st = (it % NSLOT) // 2
        A.dsw("ds_write_b64", v(vPad + st), v(vOnes2, 2), offset=((it % NSLOT) % 2) * SLOT)
        A.waitcnt(lg=0)
        A.barrier()
        ST(f"b{it}")

    l_ready(0)
    for op in chunk_ops(NPRE):
        op()
    make_srd(A, sDBG, 22, 256)
    for i in range(4):
        A.valu("v_mov_b32", v(vZero + i), 0)
    A.salu("s_lshl_b32", s(sT0), s(sRb), 4)
    A.salu("s_add_u32", s(sT0), s(sT0), s(sH))
    A.salu("s_lshl_b32", s(sT1), s(sT0), 12)
    A.scmp("s_cmp_lt_u32", s(sT0), 40)
    A.salu("s_cselect_b32", s(sT1), s(sT1), hex(OOB))
    A.valu("v_and_b32", v(vT0), 255, "v0")
    A.valu("v_lshlrev_b32", v(vT0), 4, v(vT0))
    A.bstore("buffer_store_dwordx4", v(vZero, 4), v(vT0), s(sWS, 4), s(sT1), mods="sc1")

    def kv_flag():
        A.salu("s_lshl_b32", s(sT0), s(sH), 2)
        A.scmp("s_cmp_eq_u32", s(sRb), 0)
        A.salu("s_cselect_b32", s(sT0), s(sT0), hex(OOB))
        A.scmp("s_cmp_eq_u32", s(sWv), 0)
        A.salu("s_cselect_b32", s(sT0), s(sT0), hex(OOB))
        A.valu("v_mov_b32", v(vT0), 1)
        A.valu("v_mov_b32", v(vT2), 0)
        A.bstore("buffer_store_dword", v(vT0), v(vT2), s(sDBG, 4), s(sT0), mods="sc1")

    units = [[rp_u0, rp_u1], [lambda: rp_dst(0), lambda: rp_dst(1)], [lambda: rp_dst(2), lambda: rp_dst(3)], [rp_vec]]
    for f in units.pop(0):
        f()
    RQ = opt.get("rq_it", 4)
    for it in range(1, 7):
        l_ready(it)
        if it + NPRE < 7:
            for op in chunk_ops(it + NPRE):
                op()
        if it == NPRE + 1:
            kv_flag()
        if units:
            for f in units.pop(0):
                f()
        if it == RQ:
            rp_dma()
            A.bload("buffer_load_ushort", v(vB1), v(vB1o), s(sB1, 4), s(sB1o))
            A.dsw("ds_write_b32", v(vRb), v(vZero))
            A.dsw("ds_write_b32", v(vRb), v(vZero), offset=128)
    ST("loop")
    if True:
        A.valu("v_and_b32", v(vT0), 31, v(vL))
        A.valu("v_lshrrev_b32", v(vT1), 5, v(vL))
        A.valu("v_lshrrev_b32", v(vT2), 3, v(vT0))
        A.valu("v_mul_u32_u24", v(vT2), XB, v(vT2))
        A.valu("v_and_b32", v(vT3), 7, v(vT0))
        A.valu("v_lshl_add_u32", v(vT2), v(vT3), 7, v(vT2))
        A.valu("v_lshl_add_u32", v(vT2), v(vT1), 4, v(vT2))
        A.valu("v_bfe_u32", v(vT3), v(vT0), 1, 1)
        A.valu("v_xor_b32", v(vT3), s(sPs), v(vT3))
        A.valu("v_lshl_add_u32", v(vT2), v(vT3), 6, v(vT2))
        A.salu("s_add_u32", s(sT0), s(sMx), hex((6 % NSLOT) * SLOT))
        A.valu("v_add_u32", v(vT2), s(sT0), v(vT2))
        A.dsr("ds_read_b128", v(72, 4), v(vT2))
        A.dsr("ds_read_b128", v(76, 4), v(vT2), offset=32)
        A.salu("s_add_u32", s(sT0), s(sKc), 6)
        A.scmp("s_cmp_ge_u32", s(sT0), 7)
        A.salu("s_cselect_b32", s(sT1), 7, 0)
        A.salu("s_sub_u32", s(sT0), s(sT0), s(sT1))
        A.salu("s_lshl_b32", s(sT0), s(sT0), 2)
        A.salu("s_lshl_b32", s(sT1), s(sPs), 1)
        A.salu("s_add_u32", s(sT0), s(sT0), s(sT1))
        A.salu("s_lshl_b32", s(sT1), s(sRb), 2)
        A.salu("s_add_u32", s(sT1), s(sT1), s(sWv))
        A.salu("s_mul_i32", s(sT1), s(sT1), 28)
        A.salu("s_add_u32", s(sT0), s(sT0), s(sT1))
        A.salu("s_lshl_b32", s(sT0), s(sT0), 10)
        A.salu("s_add_u32", s(sT0), s(sT0), hex(WS_XF))
        A.bstore("buffer_store_dwordx4", v(72, 4), v(vL16), s(sWS, 4), s(sT0), mods=STM)
        A.bstore("buffer_store_dwordx4", v(76, 4), v(vL16), s(sWS, 4), s(sT0), offset=1024, mods=STM)
    A.barrier()
    if opt.get("rp_mid", 0):
        rp_part1()
    A.barrier()
    if not opt.get("rp_mid", 0):
        rp_part1()
    rp_part2()
    stamp_flush(A, opt, 0, sWS, 26, vE, vT5, sT0) if False else None
    A.misc("s_endpgm")

    A.label("K1_TEAM_Q")
    A.vm, A.lg, A.smem_pending = list(saved[0]), list(saved[1]), set(saved[2])
    if opt.get("tch"):
        A.salu("s_mul_i32", s(sT0), "s2", 7168)
        A.salu("s_lshl_b32", s(sT1), s(sWv), 11)
        A.salu("s_add_u32", s(sT0), s(sT0), s(sT1))
        make_srd(A, sX, 4, 2048 * 896)
        A.bload("buffer_load_dwordx4", v(136, 4), v(vL16), s(sX, 4), s(sT0))
        A.bload("buffer_load_dwordx4", v(140, 4), v(vL16), s(sX, 4), s(sT0), offset=1024)
        A.salu("s_mul_i32", s(sT0), "s2", 4704)
        A.salu("s_mul_i32", s(sT1), s(sWv), 1280)
        A.salu("s_add_u32", s(sT0), s(sT0), s(sT1))
        make_srd(A, sW, 6, 448 * 2688)
        A.bload("buffer_load_dwordx4", v(144, 4), v(vL16), s(sW, 4), s(sT0))
        A.bload("buffer_load_dword", v(148), v(vL16), s(sW, 4), s(sT0), offset=1024)
    ST("pre0")
    lds_addrs()
    make_srd(A, sWS, 24, WS_END)
    ST("pre1")
    accQ = acc0
    ST("pre2")
    A.barrier()
    ST("b0")
    for op in read_ops(0, 0, 0, (0,)):
        op()
    for it in range(7):
        for p in range(4):
            buf = p & 1
            if p < 3:
                rd = read_ops(it, p + 1, (p + 1) & 1, (0,))
            else:
                if it < 6:
                    A.waitcnt(lg=0)
                    A.barrier()
                    ST(f"b{it + 1}")
                    rd = read_ops(it + 1, 0, 0, (0,))
                else:
                    rd = []
            first = (it == 0 and p == 0)
            xf = v(vXF + 4 * buf, 4)
            wq = v(vWF + 8 * buf, 4)
            A.mfma32(v(accQ, 16), wq, xf, 0 if first else v(accQ, 16))
            pop(rd, 3)
            A.mfma("v_mfma_f32_4x4x4_16b_bf16", v(accSS, 4), v(vXF + 4 * buf, 2), v(vXF + 4 * buf, 2), 0 if first else v(accSS, 4))
            A.mfma("v_mfma_f32_4x4x4_16b_bf16", v(accSS + 4, 4), v(vXF + 4 * buf + 2, 2), v(vXF + 4 * buf + 2, 2), 0 if first else v(accSS + 4, 4))
            if p == 0:
                A.mfma("v_mfma_f32_16x16x32_bf16", v(accCS, 4), v(vSel, 4), wq, 0 if it == 0 else v(accCS, 4))
    ST("loop")
    vSum, vSS, vMean, vRstd = vE + 4, vE + 5, vE + 6, vE + 8
    vTa, vTb = vE + 10, vE + 11
    vXE, vWE, vCS = vE + 12, vE + 16, vE + 20
    colsum_write((0,))
    for i in range(4):
        A.valu("v_add_f32", v(accSS + i), v(accSS + i), v(accSS + 4 + i))
    A.valu("v_and_b32", v(vT1), 3, v(vL))
    A.cmp("v_cmp_eq_u32", "vcc", 1, v(vT1))
    A.cndmask(v(vTa), v(accSS), v(accSS + 1))
    A.cmp("v_cmp_eq_u32", "vcc", 2, v(vT1))
    A.cndmask(v(vTa), v(vTa), v(accSS + 2))
    A.cmp("v_cmp_eq_u32", "vcc", 3, v(vT1))
    A.cndmask(v(vTa), v(vTa), v(accSS + 3))
    sum_halves(A, v(vSS), v(vTa), v(vTb))
    bcast_hi(A, v(vSum), v(accQ + 12), v(vTb))
    A.valu("v_mul_f32", v(vMean), f32(-1.0 / 448), v(vSum))
    A.valu("v_mul_f32", v(vSS), f32(1.0 / 448), v(vSS))
    A.valu("v_fma_f32", v(vSS), "-" + v(vMean), v(vMean), v(vSS))
    A.valu("v_max_f32", v(vSS), 0, v(vSS))
    A.valu("v_add_f32", v(vSS), f32(1e-5), v(vSS))
    A.valu("v_rsq_f32", v(vRstd), v(vSS))
    A.valu("v_cvt_pk_bf16_f32", v(vXE), v(vMean), v(vMean))
    A.valu("v_lshlrev_b32", v(vTb), 16, v(vXE))
    A.valu("v_sub_f32", v(vTb), v(vMean), v(vTb))
    A.valu("v_cvt_pk_bf16_f32", v(vXE + 1), v(vTb), 0)
    A.salu("s_lshl_b32", s(sT0), s(sWv), 7)
    A.salu("s_add_u32", s(sT1), s(sT0), hex(L_RS))
    A.valu("v_lshl_add_u32", v(vT2), v(vT0), 2, s(sT1))
    A.dsw("ds_write_b32", v(vT2), v(vRstd))
    A.salu("s_lshl_b32", s(sT0), s(sWv), 8)
    A.salu("s_add_u32", s(sT1), s(sT0), hex(L_XE))
    A.valu("v_lshl_add_u32", v(vT2), v(vT0), 3, s(sT1))
    A.dsw("ds_write_b64", v(vT2), v(vXE, 2))
    A.valu("v_mov_b32", v(vXE + 2), 0)
    A.valu("v_mov_b32", v(vXE + 3), 0)
    A.valu("v_mov_b32", v(vRstd + 1), v(vRstd))
    A.waitcnt(lg=0)
    A.barrier()
    ST("e1")
    A.dsr("ds_read_b128", v(vCS, 4), v(vT4))
    A.valu("v_lshrrev_b32", v(vT1), 5, v(vL))
    A.cmp("v_cmp_eq_u32", "vcc", 0, v(vT1))
    we_frag(vCS, vWE)
    A.mfma32(v(accQ, 16), v(vWE, 4), v(vXE, 4), v(accQ, 16))
    A.salu("s_lshl_b32", s(sT0), s(sRb), 1)
    A.salu("s_lshr_b32", s(sT1), s(sWv), 1)
    A.salu("s_add_u32", s(sT0), s(sT0), s(sT1))
    A.salu("s_lshl_b32", s(sT0), s(sT0), 6)
    A.salu("s_lshl_b32", s(sT1), s(sHq), 2)
    A.salu("s_add_u32", s(sT0), s(sT0), s(sT1))
    A.salu("s_lshr_b32", s(sT1), s(sHq), 3)
    A.salu("s_xor_b32", s(sT1), s(sT1), s(sWv))
    A.salu("s_and_b32", s(sT1), s(sT1), 1)
    A.salu("s_lshl_b32", s(sT1), s(sT1), 1)
    A.salu("s_add_u32", s(sT0), s(sT0), s(sT1))
    A.salu("s_lshl_b32", s(sT0), s(sT0), 10)
    A.salu("s_add_u32", s(sT0), s(sT0), hex(WS_PQ))
    vPQ = vP + 16
    phi_pack(accQ, lambda i: v(vRstd, 2), vPQ)
    A.bstore("buffer_store_dwordx4", v(vPQ, 4), v(vL16), s(sWS, 4), s(sT0), mods=STM)
    A.bstore("buffer_store_dwordx4", v(vPQ + 4, 4), v(vL16), s(sWS, 4), s(sT0), offset=1024, mods=STM)
    A.barrier()
    ST("e2")
    stamp_flush(A, opt, 0, sWS, 26, vE, vT5, sT0)
    A.misc("s_endpgm")

    A.label("K1_TEAM_KV")
    A.vm, A.lg, A.smem_pending = list(saved[0]), list(saved[1]), set(saved[2])
    if opt.get("tch", 0) >= 2:
        A.salu("s_mul_i32", s(sT0), "s2", 6272)
        A.salu("s_mul_i32", s(sT1), s(sWv), 1600)
        A.salu("s_add_u32", s(sT0), s(sT0), s(sT1))
        for k, (b, sz) in enumerate(((12, 448 * 3584), (16, 1792 * 896))):
            make_srd(A, sRP, b, sz)
            A.bload("buffer_load_dwordx4", v(136 + 8 * k, 4), v(vL16), s(sRP, 4), s(sT0))
            A.bload("buffer_load_dwordx4", v(140 + 8 * k, 4), v(vL16), s(sRP, 4), s(sT0), offset=576)
    if opt.get("prefetch", 1):
        here = "K1_PCREF"
        A.misc(f"s_getpc_b64 {s(sPC, 2)}")
        A.raw(f"{here}:")
        A.misc(f"s_sub_u32 {s(sPC)}, {s(sPC)}, {here}-{KN}")
        A.misc(f"s_subb_u32 {s(sPC + 1)}, {s(sPC + 1)}, 0")
        A.salu("s_lshr_b32", s(sT0), "s2", 3)
        A.salu("s_lshl_b32", s(sT0), s(sT0), 2)
        A.salu("s_add_u32", s(sT0), s(sT0), s(sWv))
        A.salu("s_lshl_b32", s(sT0), s(sT0), 8)
        A.valu("v_and_b32", v(vT0), 1, v(vL))
        A.valu("v_lshl_add_u32", v(vT0), v(vT0), 7, s(sT0))
        A.misc(f"v_min_u32 {v(vT0)}, K2_END-{KN}-4, {v(vT0)}")
        A.gload("global_load_dword", v(47), v(vT0), s(sPC, 2))
    lds_addrs()
    make_srd(A, sWS, 24, WS_END)
    make_srd(A, sDBG, 22, 256)
    accK, accV = acc0, acc1
    ST("pre2")
    A.barrier()
    ST("b0")
    for op in read_ops(0, 0, 0, (1, 2)):
        op()
    for it in range(7):
        for p in range(4):
            buf = p & 1
            if p < 3:
                rd = read_ops(it, p + 1, (p + 1) & 1, (1, 2))
            else:
                if it < 6:
                    A.waitcnt(lg=0)
                    A.barrier()
                    ST(f"b{it + 1}")
                    rd = read_ops(it + 1, 0, 0, (1, 2))
                else:
                    rd = []
            first = (it == 0 and p == 0)
            xf = v(vXF + 4 * buf, 4)
            wk, wv = v(vWF + 8 * buf, 4), v(vWF + 8 * buf + 4, 4)
            A.mfma32(v(accK, 16), xf, wk, 0 if first else v(accK, 16))
            pop(rd, 3)
            A.mfma32(v(accV, 16), xf, wv, 0 if first else v(accV, 16))
            pop(rd, 2)
            if p == 0:
                for k, wf in enumerate((wk, wv)):
                    A.mfma("v_mfma_f32_16x16x32_bf16", v(accCS + 4 * k, 4), v(vSel, 4), wf, 0 if it == 0 else v(accCS + 4 * k, 4))
        if it == 5:
            A.valu("v_mov_b32", v(vT2), 0)
            A.salu("s_lshl_b32", s(sW4), s(sH), 2)
            A.bload("buffer_load_dword", v(vFlag), v(vT2), s(sDBG, 4), s(sW4), mods="sc1")
    ST("loop")
    vXE, vWE, vCS = vE + 4, vE + 8, vE + 16
    colsum_write((1, 2))
    A.valu("v_lshrrev_b32", v(vT1), 5, v(vL))
    A.salu("s_lshl_b32", s(sT0), s(sWv), 7)
    A.salu("s_add_u32", s(sT0), s(sT0), hex(L_RS))
    A.valu("v_lshl_add_u32", v(vT2), v(vT1), 4, s(sT0))
    A.salu("s_lshl_b32", s(sT0), s(sWv), 8)
    A.salu("s_add_u32", s(sT0), s(sT0), hex(L_XE))
    A.valu("v_lshl_add_u32", v(vT3), v(vT0), 3, s(sT0))
    vMk, vOv = vE + 2, vE + 3
    A.cmp("v_cmp_gt_u32", "vcc", 28, v(vT0))
    A.cndmask(v(vMk), 0, -1)
    A.cmp("v_cmp_eq_u32", "vcc", 28, v(vT0))
    A.cndmask(v(vOv), 0, v(vOnes2))
    A.valu("v_mov_b32", v(vXE + 2), 0)
    A.valu("v_mov_b32", v(vXE + 3), 0)
    A.cmp("v_cmp_eq_u32", "vcc", 0, v(vT1))
    A.waitcnt(lg=0)
    A.barrier()
    ST("e1")
    for k in range(2):
        A.dsr("ds_read_b128", v(vCS + 4 * k, 4), v(vT4), offset=16 * (k + 1))
    A.dsr("ds_read_b64", v(vXE, 2), v(vT3))
    for q in range(4):
        A.dsr("ds_read_b128", v(vR + 4 * q, 4), v(vT2), offset=32 * q)
    for k in range(2):
        we_frag(vCS + 4 * k, vWE + 4 * k)
    A.mfma32(v(accK, 16), v(vXE, 4), v(vWE, 4), v(accK, 16))
    A.mfma32(v(accV, 16), v(vXE, 4), v(vWE + 4, 4), v(accV, 16))
    vPK, vVV = vP + 16, vP + 24
    phi_pack(accK, lambda i: v(vR + i, 2), vPK)
    for i in range(8):
        A.valu("v_and_b32", v(vPK + i), v(vMk), v(vPK + i))
    for i in range(0, 16, 2):
        A.valu("v_pk_mul_f32", v(accV + i, 2), v(accV + i, 2), v(vR + i, 2))
    for i in range(0, 16, 2):
        A.valu("v_cvt_pk_bf16_f32", v(vVV + i // 2), v(accV + i), v(accV + i + 1))
        A.valu("v_and_or_b32", v(vVV + i // 2), v(vVV + i // 2), v(vMk), v(vOv))
    accKV = accK
    A.mfma32(v(accKV, 16), v(vPK, 4), v(vVV, 4), 0)
    A.mfma32(v(accKV, 16), v(vPK + 4, 4), v(vVV + 4, 4), v(accKV, 16))
    A.valu("v_add_u32", v(vT2), s(sM4), v(vL16))
    A.salu("s_lshl_b32", s(sT0), s(sWv), 10)
    A.valu("v_lshl_add_u32", v(vT3), v(vL), 2, s(sT0))
    for g in range(4):
        A.dsw("ds_write_b128", v(vT2), v(accKV + 4 * g, 4), offset=1024 * g)
    A.waitcnt(lg=0)
    A.barrier()
    ST("e2")
    vKR = accV
    for src in range(4):
        for u2 in range(2):
            o = (src * 4096 + u2 * 512) // 256
            A.dsr("ds_read2st64_b32", v(vKR + 4 * src + 2 * u2, 2), v(vT3), mods=f" offset0:{o} offset1:{o + 1}")
    A.readfirstlane(s(sT1), v(vFlag))
    A.scmp("s_cmp_lg_u32", s(sT1), 0)
    A.misc("s_cbranch_scc1 K1_FLAG_OK")
    A.salu("s_mov_b32", s(sCnt), 0)
    A.valu("v_mov_b32", v(vT1), 0)
    A.label("K1_POLL")
    A.misc(f"buffer_load_dword {v(vFlag)}, {v(vT1)}, {s(sDBG, 4)}, {s(sW4)} offen sc1")
    A.misc("s_waitcnt vmcnt(0)")
    A.misc(f"v_readfirstlane_b32 {s(sT1)}, {v(vFlag)}")
    A.misc(f"s_add_u32 {s(sCnt)}, {s(sCnt)}, 1")
    A.misc(f"s_cmp_gt_u32 {s(sCnt)}, 0x40000")
    A.misc("s_cbranch_scc1 K1_FLAG_OK")
    A.misc(f"s_cmp_eq_u32 {s(sT1)}, 0")
    A.misc("s_cbranch_scc1 K1_POLL")
    A.label("K1_FLAG_OK")
    for u in range(4):
        A.valu("v_add_f32", v(vKR + u), v(vKR + u), v(vKR + 4 + u))
        A.valu("v_add_f32", v(vKR + 8 + u), v(vKR + 8 + u), v(vKR + 12 + u))
        A.valu("v_add_f32", v(vKR + u), v(vKR + u), v(vKR + 8 + u))
    A.salu("s_lshl_b32", s(sT1), s(sH), 12)
    A.salu("s_add_u32", s(sT1), s(sT1), hex(WS_KV))
    for u in range(4):
        A.bstore("buffer_atomic_add_f32", v(vKR + u), v(vT3), s(sWS, 4), s(sT1), offset=256 * u)
    ST("at")
    stamp_flush(A, opt, 0, sWS, 26, vE, vT5, sT0)
    A.label("K1_DONE")
    A.misc("s_endpgm")
    A.label("K1_END")
    return A.text(), LDS_BYTES


def gen_k2(opt):
    A = Asm()
    KN = "k2_kernel"
    L_W1 = 0
    L_RB = 114688
    L_CNT = L_RB + 1024
    LDS_BYTES = 163840
    sX, sWS, sOUT, sB2 = 28, 32, 36, 40
    sWv, sG, sJ, sRt2, sCt, sT0, sT1, sT2, sT3 = 44, 45, 46, 47, 48, 49, 50, 51, 52
    sWhi, sWlo, sCnt, sMyFl = 53, 54, 55, 56
    sRow, sCol = 58, 59
    sW2p, sH1p, sFl, sPollB = 60, 61, 62, 63
    sW1s, sW1m = 64, 65
    sOne = 66
    sK4 = 68
    sColB, sRowC, sHs = 72, 73, 74
    sH1a, sH1b = 75, 76

    A.raw(f".globl {KN}")
    A.raw(".p2align 8")
    A.raw(f".type {KN},@function")
    A.raw(f"{KN}:")
    A.scmp("s_cmp_ge_u32", "s2", 224)
    A.misc("s_cbranch_scc1 K2_DONE")
    SM = {"bc": 1, "f0": 2, "p0": 3, "c1": 4, "ce": 5, "p2": 6, "dm": 7}
    if opt.get("stamps") == 4:
        SM = {"p0": 1, "ce": 2}
    ST = lambda k: stamp(A, opt, SM.get(k))
    stamp(A, opt, 0)
    A.sload("s_load_dwordx2", s(24, 2), s(0, 2), 80)
    A.sload("s_load_dwordx4", s(16, 4), s(0, 2), 56)

    vL, vL16, vT0, vT1, vT2, vT3, vT4, vT5 = 1, 2, 3, 4, 5, 6, 7, 8
    vHH, vR31, vOne = 9, 10, 11
    vRes = 12
    vB2 = 20
    vL16b, vRs2, vZ, vIdxB = 28, 29, 30, 31
    vKV = 32
    vPQ = 96
    acc = 160
    vTA = 224
    aWO = 0

    A.valu("v_and_b32", v(vL), 63, "v0")
    A.valu("v_lshrrev_b32", v(vT0), 6, "v0")
    A.readfirstlane(s(sWv), v(vT0))
    A.valu("v_lshlrev_b32", v(vL16), 4, v(vL))
    A.valu("v_lshrrev_b32", v(vHH), 5, v(vL))
    A.valu("v_and_b32", v(vR31), 31, v(vL))
    A.salu("s_and_b32", s(sT0), "s2", 7)
    A.salu("s_lshr_b32", s(sT1), "s2", 3)
    A.scmp("s_cmp_ge_u32", s(sT1), 14)
    A.salu("s_cselect_b32", s(sT2), 1, 0)
    A.salu("s_lshl_b32", s(sG), s(sT0), 1)
    A.salu("s_add_u32", s(sG), s(sG), s(sT2))
    A.salu("s_mul_i32", s(sT2), s(sT2), 14)
    A.salu("s_sub_u32", s(sJ), s(sT1), s(sT2))
    A.scmp("s_cmp_ge_u32", s(sJ), 7)
    A.salu("s_cselect_b32", s(sRt2), 1, 0)
    A.salu("s_mul_i32", s(sT2), s(sRt2), 7)
    A.salu("s_sub_u32", s(sCt), s(sJ), s(sT2))
    A.salu("s_lshr_b32", s(sWhi), s(sWv), 1)
    A.salu("s_and_b32", s(sWlo), s(sWv), 1)
    A.salu("s_movk_i32", s(sK4), 4096)
    A.salu("s_movk_i32", s(sK4 + 1), 8192)
    A.salu("s_movk_i32", s(sK4 + 2), 12288)
    vKVo, vPQo, vWOo = vT1, vT2, vT3
    A.salu("s_lshl_b32", s(sT0), s(sWv), 14)
    A.valu("v_add_u32", v(vKVo), s(sT0), v(vL16))
    A.salu("s_lshl_b32", s(sT1), s(sG), 1)
    A.salu("s_add_u32", s(sT1), s(sT1), s(sRt2))
    A.salu("s_lshl_b32", s(sT2), s(sT1), 16)
    A.salu("s_add_u32", s(sT2), s(sT2), s(sT0))
    A.salu("s_add_u32", s(sT2), s(sT2), hex(WS_PQ))
    A.valu("v_add_u32", v(vPQo), s(sT2), v(vL16))
    A.salu("s_lshl_b32", s(sT2), s(sCt), 16)
    A.salu("s_add_u32", s(sT2), s(sT2), s(sT0))
    A.salu("s_add_u32", s(sT2), s(sT2), hex(WS_WO))
    A.valu("v_add_u32", v(vWOo), s(sT2), v(vL16))
    make_srd(A, sWS, 24, WS_END)

    def b_load_ops(hd):
        so = 0 if hd == 0 else s(sK4 + hd - 1)
        ops = []
        for g in range(4):
            ops.append(lambda g=g: A.bload("buffer_load_dwordx4", v(vKV + 16 * hd + 4 * g, 4), v(vKVo), s(sWS, 4), so, offset=1024 * g))
        for i in range(4):
            ops.append(lambda i=i: A.bload("buffer_load_dwordx4", v(vPQ + 16 * hd + 4 * i, 4), v(vPQo), s(sWS, 4), so, offset=1024 * i))
        for i in range(4):
            ops.append(lambda i=i: A.bload("buffer_load_dwordx4", a(aWO + 16 * hd + 4 * i, 4), v(vWOo), s(sWS, 4), so, offset=1024 * i))
        return ops

    bq = b_load_ops(0) + b_load_ops(1) + b_load_ops(2) + b_load_ops(3)
    pop(bq, opt.get("b_pre", 16))

    A.salu("s_lshl_b32", s(sRow), s(sT1), 1)
    A.salu("s_add_u32", s(sRow), s(sRow), s(sWhi))
    A.salu("s_lshl_b32", s(sCol), s(sCt), 1)
    A.salu("s_add_u32", s(sCol), s(sCol), s(sWlo))
    A.salu("s_lshl_b32", s(sT2), s(sT1), 2)
    A.salu("s_add_u32", s(sT2), s(sT2), s(sWv))
    A.salu("s_mul_i32", s(sT2), s(sT2), 56 * 1024)
    A.salu("s_add_u32", s(sH1p), s(sT2), hex(WS_H1))
    A.salu("s_lshl_b32", s(sT2), s(sCt), 2)
    A.salu("s_add_u32", s(sT2), s(sT2), s(sWv))
    A.salu("s_mul_i32", s(sT2), s(sT2), 56 * 1024)
    A.salu("s_add_u32", s(sW2p), s(sT2), hex(WS_W2))
    make_srd(A, sOUT, 18, 2048 * 896)
    make_srd(A, sB2, 16, 896)
    A.salu("s_mov_b32", s(sOne), "1.0")
    A.salu("s_mov_b32", s(sOne + 1), "1.0")
    A.salu("s_lshl_b32", s(sT0), s(sRow), 5)
    A.valu("v_add_u32", v(vT0), s(sT0), v(vR31))
    A.salu("s_movk_i32", s(sT1), 896)
    A.valu("v_mul_lo_u32", v(vT0), v(vT0), s(sT1))
    A.valu("v_lshl_add_u32", v(vT5), v(vHH), 3, v(vT0))
    A.salu("s_lshl_b32", s(sColB), s(sCol), 6)
    A.valu("v_lshlrev_b32", v(vT4), 3, v(vHH))
    sXf = 77
    A.salu("s_mul_i32", s(sT0), s(sRow), 28)
    A.salu("s_lshl_b32", s(sT1), s(sCol), 1)
    A.salu("s_add_u32", s(sT0), s(sT0), s(sT1))
    A.salu("s_lshl_b32", s(sT0), s(sT0), 10)
    A.salu("s_add_u32", s(sXf), s(sT0), hex(WS_XF))
    A.salu("s_add_u32", s(78), s(sT0), hex(WS_H))
    for f in range(2):
        bq.append(lambda f=f: A.bload("buffer_load_dwordx4", v(vRes + 4 * f, 4), v(vL16), s(sWS, 4), s(sXf), offset=1024 * f))
    aID = 240
    A.valu("v_lshlrev_b32", v(vT0), 3, v(vHH))
    A.valu("v_sub_u32", v(vT0), v(vR31), v(vT0))
    for f in range(2):
        for dw in range(4):
            A.cmp("v_cmp_eq_u32", "vcc", 16 * f + 2 * dw, v(vT0))
            A.cndmask(v(vRs2), 0, "0x3f80" if False else v(vOne), "vcc") if False else None
            A.valu("v_mov_b32", v(vL16b), "0x3f80")
            A.cndmask(v(vRs2), 0, v(vL16b))
            A.cmp("v_cmp_eq_u32", "vcc", 16 * f + 2 * dw + 1, v(vT0))
            A.valu("v_mov_b32", v(vL16b), "0x3f800000")
            A.cndmask(v(vRs2), v(vRs2), v(vL16b))
            A.valu("v_accvgpr_write_b32", a(aID + 4 * f + dw), v(vRs2))
    for q in range(4):
        bq.append(lambda q=q: A.bload("buffer_load_dwordx2", v(vB2 + 2 * q, 2), v(vT4), s(sB2, 4), s(sColB), offset=16 * q))
    A.salu("s_lshl_b32", s(sT0), s(sJ), 2)
    A.salu("s_add_u32", s(sT0), s(sT0), s(sWv))
    A.salu("s_mul_i32", s(sT0), s(sT0), 29 * 1024)
    A.salu("s_add_u32", s(sW1s), s(sT0), hex(WS_W1))
    A.salu("s_mul_i32", s(sW1m), s(sWv), 28672)
    pf = []
    for n in range(7):
        for i in range(4):
            def op(n=n, i=i):
                if i == 0:
                    A.salu("s_add_u32", "m0", s(sW1m), hex(L_W1 + n * 4096))
                A.dma(v(vL16), s(sWS, 4), s(sW1s), offset=1024 * i)
                if i == 3:
                    A.salu("s_add_u32", s(sW1s), s(sW1s), 4096)
            pf.append(op)
    aW1E = 224
    for c4 in range(4):
        def op(c4=c4):
            A.salu("s_mul_i32", s(sT3), s(sJ), 4 * 29 * 1024)
            A.salu("s_add_u32", s(sT3), s(sT3), hex(WS_W1 + 28 * 1024 + c4 * 29 * 1024))
            A.bload("buffer_load_dwordx4", a(aW1E + 4 * c4, 4), v(vL16), s(sWS, 4), s(sT3))
        pf.append(op)
    NW1 = len(pf)
    if opt.get("abl2", 0) & 1:
        del pf[:]
    wq = []
    for k in range(0 if opt.get("abl2", 0) & 1 else 56):
        def op(k=k):
            A.bload("buffer_load_dwordx4", a(4 * k, 4), v(vL16), s(sWS, 4), s(sW2p), offset=(k % 4) * 1024)
            if k % 4 == 3:
                A.salu("s_add_u32", s(sW2p), s(sW2p), 4096)
        wq.append(op)
    A.salu("s_lshl_b32", s(sFl), s(sG), 11)
    A.salu("s_add_u32", s(sFl), s(sFl), hex(WS_FLAGS))
    A.salu("s_lshl_b32", s(sT0), s(sJ), 7)
    A.salu("s_add_u32", s(sMyFl), s(sT0), s(sFl))
    A.valu("v_mov_b32", v(vOne), 1)
    A.valu("v_mov_b32", v(vZ), 0)
    A.valu("v_min_u32", v(vT0), 6, v(vL))
    A.salu("s_mul_i32", s(sT0), s(sWhi), 7)
    A.valu("v_add_u32", v(vT0), s(sT0), v(vT0))
    A.valu("v_lshlrev_b32", v(vIdxB), 7, v(vT0))
    A.valu("v_add_u32", v(vL16b), hex(57344), v(vL16))

    units = [(hd, aa) for hd in range(4) for aa in range(2)]
    bcount = [0]
    NW1A = [opt.get("w1a", 12)]
    vN0, vN1, vN2 = vT0, vRs2, vL16b

    def bpop():
        bcount[0] += 1
        if bq:
            pop(bq, opt.get("bsp", 2))
        elif NW1A[0] > 0 and bcount[0] % opt.get("w1a_every", 2) == 0:
            pop(pf)
            NW1A[0] -= 1

    def b_stage1(u):
        hd, aa = units[u]
        if aa == 0:
            base = vKV + 16 * hd
            for i in range(8):
                A.valu("v_cvt_pk_bf16_f32", v(base + i), v(base + 2 * i), v(base + 2 * i + 1))
        t = vTA + 16 * (u & 1)
        A.mfma32(v(t, 16), v(vKV + 16 * hd, 4), v(vPQ + 16 * hd + 8 * aa, 4), 0)
        bpop()
        A.mfma32(v(t, 16), v(vKV + 16 * hd + 4, 4), v(vPQ + 16 * hd + 8 * aa + 4, 4), v(t, 16))
        bpop()

    def b_norm(u):
        t = vTA + 16 * (u & 1)
        A.valu("v_add_f32", v(vN0), f32(1e-6), v(t + 12))
        A.valu("v_rcp_f32", v(vN0), v(vN0))
        bcast_hi(A, v(vN1), v(vN0), v(vN2))
        for i in range(16):
            A.valu("v_mul_f32", v(t + i), v(vN1), v(t + i))
        for i in range(8):
            A.valu("v_cvt_pk_bf16_f32", v(t + i), v(t + 2 * i), v(t + 2 * i + 1))

    def b_stage2(u):
        hd, aa = units[u]
        t = vTA + 16 * (u & 1)
        for f in range(2):
            for bb in range(2):
                blk = acc + 16 * (2 * aa + bb)
                first = (hd == 0 and f == 0)
                A.mfma32(v(blk, 16), a(aWO + 16 * hd + 8 * f + 4 * bb, 4), v(t + 4 * f, 4), 0 if first else v(blk, 16))
                bpop()

    b_stage1(0)
    for u in range(8):
        if u + 1 < 8:
            b_stage1(u + 1)
        b_norm(u)
        b_stage2(u)
    assert not bq
    for f in range(2):
        A.mfma32(v(acc, 16), a(aID + 4 * f, 4), v(vRes + 4 * f, 4), v(acc, 16))
    ST("bc")
    A.valu("v_add_u32", v(vL16b), hex(57344), v(vL16))

    vRA = 240

    def red_addrs(base):
        for r in range(1, 4):
            A.salu("s_xor_b32", s(sT0), s(sWv), r)
            A.salu("s_mul_i32", s(sT0), s(sT0), 3 * 4096)
            A.salu("s_add_u32", s(sT0), s(sT0), hex(base + (r - 1) * 4096))
            A.valu("v_add_u32", v(vRA + r), s(sT0), v(vL16))
        A.salu("s_mul_i32", s(sT0), s(sWv), 3 * 4096)
        if base:
            A.salu("s_add_u32", s(sT0), s(sT0), hex(base))
        A.valu("v_add_u32", v(vRA), s(sT0), v(vL16))

    def red_write(r):
        for g in range(4):
            A.dsw("ds_write_b128", v(vRA + r), v(acc + 16 * r + 4 * g, 4), offset=1024 * g)

    def red_finish(rbuf):
        A.waitcnt(lg=0)
        A.barrier()
        for r in range(3):
            for g in range(4):
                A.dsr("ds_read_b128", v(rbuf + 16 * r + 4 * g, 4), v(vRA), offset=4096 * r + 1024 * g)
        for r in range(3):
            for i in range(0, 16, 2):
                A.valu("v_pk_add_f32", v(acc + i, 2), v(acc + i, 2), v(rbuf + 16 * r + i, 2))

    def reduce_tiles(rbuf, base, side=None, nside=0):
        for r in range(1, 4):
            A.salu("s_xor_b32", s(sT0), s(sWv), r)
            A.salu("s_mul_i32", s(sT0), s(sT0), 3 * 4096)
            A.salu("s_add_u32", s(sT0), s(sT0), hex(base + (r - 1) * 4096))
            A.valu("v_add_u32", v(vT0), s(sT0), v(vL16))
            for g in range(4):
                A.dsw("ds_write_b128", v(vT0), v(acc + 16 * r + 4 * g, 4), offset=1024 * g)
        A.salu("s_mul_i32", s(sT0), s(sWv), 3 * 4096)
        if base:
            A.salu("s_add_u32", s(sT0), s(sT0), hex(base))
        A.valu("v_add_u32", v(vT0), s(sT0), v(vL16))
        if side is not None:
            pop(side, nside)
        A.waitcnt(lg=0)
        A.barrier()
        for r in range(3):
            for g in range(4):
                A.dsr("ds_read_b128", v(rbuf + 16 * r + 4 * g, 4), v(vT0), offset=4096 * r + 1024 * g)
        for r in range(3):
            for i in range(0, 16, 2):
                A.valu("v_pk_add_f32", v(acc + i, 2), v(acc + i, 2), v(rbuf + 16 * r + i, 2))

    reduce_tiles(vKV, L_RB, pf, opt.get("w1r", 6))
    for i in range(8):
        A.valu("v_cvt_pk_bf16_f32", v(vRes + i), v(acc + 2 * i), v(acc + 2 * i + 1))
    A.bstore("buffer_store_dwordx4", v(vRes, 4), v(vL16), s(sWS, 4), s(78), mods="sc1")
    A.bstore("buffer_store_dwordx4", v(vRes + 4, 4), v(vL16), s(sWS, 4), s(78), offset=1024, mods="sc1")
    vS1, vS2 = vTA, vTA + 1
    A.valu("v_mov_b32", v(vT2), "0x3f803f80")
    A.valu("v_dot2_f32_bf16", v(vT0), v(vRes), v(vT2), 0)
    A.valu("v_dot2_f32_bf16", v(vT1), v(vRes), v(vRes), 0)
    for i in range(1, 8):
        A.valu("v_dot2_f32_bf16", v(vT0), v(vRes + i), v(vT2), v(vT0))
        A.valu("v_dot2_f32_bf16", v(vT1), v(vRes + i), v(vRes + i), v(vT1))
    sum_halves(A, v(vS1), v(vT0), v(vT3))
    sum_halves(A, v(vS2), v(vT1), v(vT3))
    A.cmp("v_cmp_eq_u32", "vcc", 0, v(vHH))
    A.valu("v_lshlrev_b32", v(vT0), 3, v(vR31))
    A.valu("v_mov_b32", v(vT1), hex(OOB))
    A.cndmask(v(vT0), v(vT1), v(vT0))
    A.salu("s_mul_i32", s(sT0), s(sRow), 14)
    A.salu("s_add_u32", s(sT0), s(sT0), s(sCol))
    A.salu("s_lshl_b32", s(sT0), s(sT0), 8)
    A.salu("s_add_u32", s(sT0), s(sT0), hex(WS_HST))
    A.bstore("buffer_store_dwordx2", v(vS1, 2), v(vT0), s(sWS, 4), s(sT0), mods="sc1")

    vIdxD, vP = 254, 255

    def post_flag(idx):
        A.salu("s_add_u32", s(sT0), s(sMyFl), idx * 32768)
        if idx == 0:
            A.scmp("s_cmp_eq_u32", s(sWv), 0)
        else:
            A.valu("v_mov_b32", v(vT0), hex(L_CNT + 4 * idx))
            A.salu("s_mov_b64", "exec", 1)
            A.dsr("ds_add_rtn_u32", v(vT1), v(vT0) + ", " + v(vOne), mods="")
            A.salu("s_mov_b64", "exec", -1)
            A.readfirstlane(s(sT1), v(vT1))
            A.scmp("s_cmp_eq_u32", s(sT1), 3)
        A.salu("s_cselect_b32", s(sT0), s(sT0), hex(OOB))
        A.bstore("buffer_store_dword", v(vOne), v(vZ), s(sWS, 4), s(sT0), mods="sc1")

    def poll_issue(idx, vidx):
        A.salu("s_add_u32", s(sPollB), s(sFl), idx * 32768)
        A.bload("buffer_load_dword", v(vP), v(vidx), s(sWS, 4), s(sPollB), mods="sc1")

    def poll_check(tag, vidx):
        A.cmp("v_cmp_ne_u32", "vcc", 1, v(vP))
        A.salu("s_mov_b32", s(sCnt), 0)
        A.misc("s_nop 1")
        A.misc(f"s_cbranch_vccz K2_OK{tag}")
        A.label(f"K2_POLL{tag}")
        A.misc(f"buffer_load_dword {v(vP)}, {v(vidx)}, {s(sWS, 4)}, {s(sPollB)} offen sc1")
        A.misc("s_waitcnt vmcnt(0)")
        A.misc(f"v_cmp_ne_u32 vcc, 1, {v(vP)}")
        A.misc(f"s_add_u32 {s(sCnt)}, {s(sCnt)}, 1")
        A.misc(f"s_cmp_gt_u32 {s(sCnt)}, 0x40000")
        A.misc(f"s_cbranch_scc1 K2_OK{tag}")
        A.misc("s_nop 1")
        A.misc(f"s_cbranch_vccnz K2_POLL{tag}")
        A.label(f"K2_OK{tag}")

    A.salu("s_lshl_b32", s(sRowC), s(sG), 2)
    A.salu("s_add_u32", s(sRowC), s(sRowC), s(sWv))
    A.salu("s_mul_i32", s(sHs), s(sRowC), 28 * 1024)
    A.salu("s_add_u32", s(sHs), s(sHs), hex(WS_H))
    A.salu("s_mul_i32", s(sT2), s(sRowC), 14 * 256)
    A.salu("s_add_u32", s(sT2), s(sT2), hex(WS_HST))
    A.valu("v_mul_u32_u24", v(vT4), 7 * 256, v(vHH))
    A.valu("v_lshl_add_u32", v(vT4), v(vR31), 3, v(vT4))
    A.valu("v_add_u32", v(vT4), s(sT2), v(vT4))
    A.salu("s_lshr_b32", s(sT0), s(sRowC), 1)
    A.salu("s_mul_i32", s(sT0), s(sT0), 4 * 56)
    A.salu("s_lshl_b32", s(sT1), s(sJ), 1)
    A.salu("s_add_u32", s(sT0), s(sT0), s(sT1))
    A.salu("s_add_u32", s(sT1), s(sT0), s(sWlo))
    A.salu("s_lshl_b32", s(sT1), s(sT1), 10)
    A.salu("s_add_u32", s(sH1a), s(sT1), hex(WS_H1))
    A.salu("s_xor_b32", s(sT1), s(sWlo), 1)
    A.salu("s_add_u32", s(sT1), s(sT0), s(sT1))
    A.salu("s_lshl_b32", s(sT1), s(sT1), 10)
    A.salu("s_add_u32", s(sH1b), s(sT1), hex(WS_H1))

    vTch = 239
    A.valu("v_bfe_u32", v(vT0), v(vL), 3, 2)
    A.valu("v_mul_u32_u24", v(vT0), 56 * 1024, v(vT0))
    A.valu("v_and_b32", v(vT1), 7, v(vL))
    A.valu("v_lshl_add_u32", v(vT0), v(vT1), 7, v(vT0))
    A.valu("v_bfe_u32", v(vT1), v(vL), 4, 1)
    A.cmp("v_cmp_eq_u32", "vcc", 1, v(vT1))
    A.valu("v_mov_b32", v(vT1), s(sH1a))
    A.valu("v_mov_b32", v(vT2), s(sH1b))
    A.cndmask(v(vT1), v(vT1), v(vT2))
    A.valu("v_add_u32", v(vRs2), v(vT0), v(vT1))
    A.salu("s_movk_i32", s(80), 28 * 1024)
    A.waitcnt(vm=0, lg=0)
    A.barrier()
    post_flag(0)
    if opt.get("tch2", 0) & 1:
        A.valu("v_min_u32", v(vT0), 15, v(vL))
        A.valu("v_lshlrev_b32", v(vT0), 7, v(vT0))
        A.bload("buffer_load_dword", a(248), v(vT0), s(sWS, 4), s(78), mods="sc1")
    A.valu("v_mov_b32", v(vT0), hex(L_CNT))
    A.dsw("ds_write_b32", v(vT0), v(vZ), offset=4)
    A.dsw("ds_write_b32", v(vT0), v(vZ), offset=8)
    ST("f0")
    pop(pf, 100)
    pop(wq, opt.get("w2_g1", 8))
    poll_issue(0, vIdxB)
    poll_check("A", vIdxB)
    ST("p0")

    vH = 32
    vWF = 144
    accC = 160
    vST = 224
    vHE = 240
    vC1, vC2 = 238, 244
    vG = 246
    hq = []
    for ks in range(28):
        def op(ks=ks):
            A.bload("buffer_load_dwordx4", v(vH + 4 * ks, 4), v(vL16), s(sWS, 4), s(sHs), offset=(ks % 4) * 1024, mods="sc1")
            if ks % 4 == 3:
                A.salu("s_add_u32", s(sHs), s(sHs), 4096)
        hq.append(op)
    for u in range(7):
        hq.append(lambda u=u: A.bload("buffer_load_dwordx2", v(vST + 2 * u, 2), v(vT4), s(sWS, 4), 0, offset=256 * u, mods="sc1"))
    pop(hq, opt.get("h_pre", 14))
    A.waitcnt(lg=0)
    A.barrier()

    def w1_read(c4, ks, buf):
        off = (c4 * 28 + ks) * 1024
        if off >= 57344:
            A.dsr("ds_read_b128", v(vWF + 4 * buf, 4), v(vL16b), offset=off - 57344)
        else:
            A.dsr("ds_read_b128", v(vWF + 4 * buf, 4), v(vL16), offset=off)

    def c_stats():
        for u in range(1, 7):
            A.valu("v_add_f32", v(vST), v(vST), v(vST + 2 * u))
            A.valu("v_add_f32", v(vST + 1), v(vST + 1), v(vST + 2 * u + 1))
        sum_halves(A, v(vST + 2), v(vST), v(vT0))
        sum_halves(A, v(vST + 3), v(vST + 1), v(vT0))
        m, var, sg, rs = vST + 4, vST + 5, vST + 6, vST + 7
        A.valu("v_mul_f32", v(m), f32(-1.0 / 448), v(vST + 2))
        A.valu("v_mul_f32", v(var), f32(1.0 / 448), v(vST + 3))
        A.valu("v_fma_f32", v(var), "-" + v(m), v(m), v(var))
        A.valu("v_max_f32", v(var), 0, v(var))
        A.valu("v_add_f32", v(var), f32(1e-5), v(var))
        A.valu("v_rsq_f32", v(rs), v(var))
        A.valu("v_mul_f32", v(sg), v(var), v(rs))
        A.valu("v_cvt_pk_bf16_f32", v(vHE), v(m), v(m))
        A.valu("v_lshlrev_b32", v(vT0), 16, v(vHE))
        A.valu("v_sub_f32", v(vT0), v(m), v(vT0))
        A.valu("v_cvt_pk_bf16_f32", v(vHE + 1), v(vT0), v(sg))
        A.valu("v_and_b32", v(vT0), "0xffff0000", v(vHE + 1))
        A.valu("v_sub_f32", v(vT0), v(sg), v(vT0))
        A.valu("v_cvt_pk_bf16_f32", v(vHE + 2), v(vT0), 0)
        A.valu("v_mov_b32", v(vHE + 3), 0)
        A.valu("v_mul_f32", v(vC1), f32(GC1), v(rs))
        A.valu("v_mul_f32", v(vT0), v(rs), v(rs))
        A.valu("v_mul_f32", v(vT0), v(vT0), v(rs))
        A.valu("v_mul_f32", v(vC2), f32(GC2), v(vT0))
        A.salu("s_lshl_b32", s(sT0), s(sWv), 7)
        A.salu("s_add_u32", s(sT0), s(sT0), hex(L_RB))
        A.valu("v_lshl_add_u32", v(vT0), v(vR31), 2, s(sT0))
        A.dsw("ds_write_b32", v(vT0), v(rs))

    st_tok = {}

    def h1_store(c4, f):
        ab = accC + 16 * c4
        wd = 2 * (c4 & 1) + f
        A.salu("s_add_u32", s(sT3), s(sH1b if (c4 & 1) else sH1a), (wd * 56 + 28 * (c4 >> 1)) * 1024)
        st_tok[(c4, f)] = A.bstore("buffer_store_dwordx4", v(ab + 4 * f, 4), v(vL16), s(sWS, 4), s(sT3), mods="sc1")

    def quad_ops(c4, q, packed):
        ab = accC + 16 * c4 + 4 * q
        t = vG + 4 * (q & 1)
        ops = []
        if (opt.get("abl2", 0) & 2) and c4 < 2:
            pass
        elif packed:
            for k in (0, 2):
                ops.append((5, lambda k=k: A.valu("v_pk_mul_f32", v(t + k, 2), v(ab + k, 2), v(ab + k, 2))))
            for k in (0, 2):
                ops.append((5, lambda k=k: A.valu("v_pk_fma_f32", v(t + k, 2), v(t + k, 2), v(vC2, 2), v(vC1, 2), mods="op_sel_hi:[1,0,0]")))
            for k in (0, 2):
                ops.append((5, lambda k=k: A.valu("v_pk_mul_f32", v(t + k, 2), v(t + k, 2), v(ab + k, 2))))
            for k in range(4):
                ops.append((8, lambda k=k: A.valu("v_exp_f32", v(t + k), v(t + k))))
            for k in (0, 2):
                ops.append((5, lambda k=k: A.valu("v_pk_add_f32", v(t + k, 2), v(t + k, 2), s(sOne, 2))))
            for k in range(4):
                ops.append((8, lambda k=k: A.valu("v_rcp_f32", v(t + k), v(t + k))))
            for k in (0, 2):
                ops.append((5, lambda k=k: A.valu("v_pk_mul_f32", v(t + k, 2), v(t + k, 2), v(ab + k, 2))))
        else:
            for k in range(4):
                ops.append((4, lambda k=k: A.valu("v_mul_f32", v(t + k), v(ab + k), v(ab + k))))
            for k in range(4):
                ops.append((5, lambda k=k: A.valu("v_fma_f32", v(t + k), v(t + k), v(vC2), v(vC1))))
            for k in range(4):
                ops.append((4, lambda k=k: A.valu("v_mul_f32", v(t + k), v(t + k), v(ab + k))))
            for k in range(4):
                ops.append((8, lambda k=k: A.valu("v_exp_f32", v(t + k), v(t + k))))
            for k in range(4):
                ops.append((4, lambda k=k: A.valu("v_add_f32", v(t + k), "1.0", v(t + k))))
            for k in range(4):
                ops.append((8, lambda k=k: A.valu("v_rcp_f32", v(t + k), v(t + k))))
            for k in range(4):
                ops.append((4, lambda k=k: A.valu("v_mul_f32", v(t + k), v(t + k), v(ab + k))))
        d = accC + 16 * c4 + 2 * q
        for k in (0, 2):
            ops.append((5, lambda k=k: A.valu("v_cvt_pk_bf16_f32", v(d + k // 2), v(t + k), v(t + k + 1))))
        if q & 1:
            ops.append((10, lambda: h1_store(c4, q >> 1)))
        return ops

    NP1 = opt.get("c_p1", 3)
    seq = [(ks, c4) for ks in range(28) for c4 in range(NP1)]
    for c4 in range(NP1, 4):
        seq += [(ks, c4) for ks in range(28)]
    n_p1 = 28 * NP1
    quads = []
    cur = []
    est = [0, 0]
    W2GAP = opt.get("w2_pace", 70)

    hold = [False]

    def pace():
        if opt.get("safe", 1) and (1, 1) in st_tok and not hold[0]:
            return
        if wq and est[0] - est[1] >= W2GAP:
            pop(wq)
            est[1] = est[0]
            est[0] += 25

    def fill(budget, packed):
        used = 0
        while used < budget:
            if not cur:
                if not quads:
                    break
                c4, q = quads.pop(0)
                cur.extend(quad_ops(c4, q, packed))
            c, fn = cur.pop(0)
            fn()
            used += c
        return used

    NB = 4
    ready_at = {}
    for n in range(3):
        w1_read(seq[n][1], seq[n][0], n % NB)
    for n, (ks, c4) in enumerate(seq):
        if n + 3 < len(seq):
            w1_read(seq[n + 3][1], seq[n + 3][0], (n + 3) % NB)
        ab = accC + 16 * c4
        A.mfma32(v(ab, 16), v(vWF + 4 * (n % NB), 4), v(vH + 4 * ks, 4), 0 if ks == 0 else v(ab, 16))
        if n < n_p1 and c4 == 0:
            pop(hq, 1 if len(hq) > 7 else 2)
        if n == n_p1 - NP1:
            assert not hq
            c_stats()
        if ks == 27:
            A.mfma32(v(ab, 16), a(aW1E + 4 * c4, 4), v(vHE, 4), v(ab, 16))
            ready_at[max(n + 2, n_p1 + 1)] = ready_at.get(max(n + 2, n_p1 + 1), []) + [c4]
        if n == n_p1 + 1:
            ST("c1")
        for c in ready_at.pop(n, []):
            quads.extend((c, q) for q in range(4))
        used = fill(opt.get("c_budget", 20), False) if n > n_p1 else 0
        if n >= opt.get("w2_start", 20):
            est[0] += max(32, 13 + used)
            pace()
    for k in sorted(ready_at):
        for c in ready_at[k]:
            quads.extend((c, q) for q in range(4))
    A.valu("v_min_u32", v(vIdxD), 13, v(vL))
    A.valu("v_lshlrev_b32", v(vIdxD), 7, v(vIdxD))
    f1_posted, f1_polled = False, False
    while quads or cur:
        used = fill(40, True)
        est[0] += used
        pace()
        if not f1_posted and (1, 1) in st_tok and len(quads) <= opt.get("f1_at", 6):
            A.wait_vm_token(st_tok[(1, 1)])
            post_flag(1)
            if opt.get("tch2", 0) & 2:
                A.bload("buffer_load_dword", a(249), v(vRs2), s(sWS, 4), 0, mods="sc1")
            f1_posted = True
            hold[0] = True
        if f1_posted and not f1_polled and len(quads) <= opt.get("f1_poll_at", 1):
            poll_issue(1, vIdxD)
            f1_polled = True
    assert f1_posted and f1_polled
    ST("ce")

    vD = 32
    WIN = 14
    DPRE = opt.get("d_pre", 6)
    dq = []
    for k in range(56):
        def op(k=k):
            if k == 28:
                poll_check("C", vIdxD)
                ST("p2")
            A.bload("buffer_load_dwordx4", v(vD + 4 * (k % 28), 4), v(vL16), s(sWS, 4), s(sH1p), offset=(k % 4) * 1024, mods="sc1")
            if k % 4 == 3:
                A.salu("s_add_u32", s(sH1p), s(sH1p), 4096)
            if k == opt.get("f2_poll_k", 23):
                poll_issue(2, vIdxD)
        dq.append(op)
    poll_check("B", vIdxD)
    pop(dq, 2 * opt.get("d_pre0", 0 if opt.get("safe", 1) else 3))
    A.wait_vm_token(st_tok[(3, 1)])
    A.waitcnt(lg=0)
    post_flag(2)
    if opt.get("tch2", 0) & 4:
        A.bload("buffer_load_dword", a(250), v(vRs2), s(sWS, 4), s(80), mods="sc1")
    pop(dq, 2 * (DPRE - opt.get("d_pre0", 0 if opt.get("safe", 1) else 3)))
    pop(wq, 100)
    vHB = 224
    pre = []
    for i in range(8):
        pre.append(lambda i=i: A.valu("v_lshlrev_b32", v(vHB + 2 * i), 16, v(vRes + i)))
        pre.append(lambda i=i: A.valu("v_and_b32", v(vHB + 2 * i + 1), "0xffff0000", v(vRes + i)))
        pre.append(lambda i=i: A.valu("v_lshlrev_b32", v(vT2), 16, v(vB2 + i)))
        pre.append(lambda i=i: A.valu("v_and_b32", v(vT3), "0xffff0000", v(vB2 + i)))
        pre.append(lambda i=i: A.valu("v_add_f32", v(vHB + 2 * i), v(vHB + 2 * i), v(vT2)))
        pre.append(lambda i=i: A.valu("v_add_f32", v(vHB + 2 * i + 1), v(vHB + 2 * i + 1), v(vT3)))
    NL = opt.get("d_last", 3)
    for pos in range(28 - NL):
        for aa in range(2):
            for bb in range(2):
                blk = acc + 16 * (2 * aa + bb)
                A.mfma32(v(blk, 16), a(8 * pos + 4 * bb, 4), v(vD + 8 * (pos % WIN) + 4 * aa, 4), 0 if pos == 0 else v(blk, 16))
                if pos >= 2:
                    pop(pre, 1)
            pop(dq)
        if pos == 20:
            A.salu("s_lshl_b32", s(sT0), s(sRt2), 1)
            A.salu("s_add_u32", s(sT0), s(sT0), s(sWhi))
            A.salu("s_lshl_b32", s(sT0), s(sT0), 7)
            A.salu("s_add_u32", s(sT0), s(sT0), hex(L_RB))
            A.valu("v_lshl_add_u32", v(vT0), v(vR31), 2, s(sT0))
            A.dsr("ds_read_b32", v(vRs2), v(vT0))
            red_addrs(0)
    assert not dq and not pre
    ST("dm")
    for r in (3, 2, 1, 0):
        aa, bb = r >> 1, r & 1
        blk = acc + 16 * r
        for pos in range(28 - NL, 28):
            A.mfma32(v(blk, 16), a(8 * pos + 4 * bb, 4), v(vD + 8 * (pos % WIN) + 4 * aa, 4), v(blk, 16))
        if r < 3:
            red_write(r + 1)
    red_finish(32)
    for i in range(16):
        A.valu("v_fma_f32", v(vHB + i), v(acc + i), v(vRs2), v(vHB + i))
    for i in range(8):
        A.valu("v_cvt_pk_bf16_f32", v(acc + 16 + i), v(vHB + 2 * i), v(vHB + 2 * i + 1))
    o = acc + 16
    for qp in range(2):
        A.permlane32_swap(v(o + 4 * qp), v(o + 4 * qp + 2))
        A.permlane32_swap(v(o + 4 * qp + 1), v(o + 4 * qp + 3))
    A.valu("v_lshl_add_u32", v(vT0), v(vHH), 3, v(vT5))
    for qp in range(2):
        A.bstore("buffer_store_dwordx4", v(o + 4 * qp, 4), v(vT0), s(sOUT, 4), s(sColB), offset=32 * qp, mods={0: "", 1: "sc1", 2: "nt"}[opt.get("ostm", 0)])
    stamp_flush(A, opt, 1, sWS, sWv, 32, vT4, sT0)
    A.label("K2_DONE")
    A.misc("s_endpgm")
    A.label("K2_END")
    return A.text(), LDS_BYTES


HEADER = """; Kernarg layout for this problem (88 bytes, ptrs only, base s[0:1]):
"""


def kd(name, nv, acc_off, ns=102):
    return f""".amdhsa_kernel {name}
  .amdhsa_next_free_vgpr {nv}
  .amdhsa_next_free_sgpr {ns}
  .amdhsa_accum_offset {acc_off}
  .amdhsa_group_segment_fixed_size 0
  .amdhsa_kernarg_size 88
  .amdhsa_user_sgpr_count 2
  .amdhsa_user_sgpr_kernarg_segment_ptr 1
  .amdhsa_system_sgpr_workgroup_id_x 1
  .amdhsa_float_denorm_mode_32 3
.end_amdhsa_kernel
"""


def gen_touch(opt):
    A = Asm()
    A.raw(".globl t_kernel")
    A.raw(".p2align 8")
    A.raw(".type t_kernel,@function")
    A.raw("t_kernel:")
    A.sload("s_load_dwordx16", s(4, 16), s(0, 2), 0)
    A.salu("s_lshl_b32", "s3", "s2", 13)
    A.valu("v_lshlrev_b32", "v1", 4, "v0")
    A.valu("v_add_u32", "v1", "s3", "v1")
    r = 4
    for base, size in ((4, 2048 * 896), (6, 448 * 2688), (8, 448 * 896), (12, 448 * 3584), (16, 1792 * 896)):
        make_srd(A, 28, base, size)
        A.bload("buffer_load_dwordx4", v(r, 4), "v1", s(28, 4), 0)
        A.salu("s_movk_i32", "s3", 4096)
        A.bload("buffer_load_dwordx4", v(r + 4, 4), "v1", s(28, 4), "s3")
        r += 8
    if opt.get("touch") == 2:
        A.sload("s_load_dwordx2", s(24, 2), s(0, 2), 80)
        make_srd(A, 28, 24, WS_END)
        A.salu("s_mul_i32", "s3", "s2", 72 * 1024)
        A.valu("v_lshlrev_b32", "v1", 4, "v0")
        for k in range(18):
            A.bload("buffer_load_dwordx4", v(44 + 4 * (k % 4), 4), "v1", s(28, 4), "s3") if k < 4 else A.misc(f"buffer_load_dwordx4 v[{44 + 4 * (k % 4)}:{47 + 4 * (k % 4)}], v1, s[28:31], s3 offen")
            A.salu("s_add_u32", "s3", "s3", 4096)
        A.misc("s_waitcnt vmcnt(0)")
    A.waitcnt(vm=0)
    A.misc("s_endpgm")
    return A.text()


def build(opt):
    k1, l1 = gen_k1(opt)
    k2, l2 = gen_k2(opt)
    out = HEADER
    if opt.get("touch"):
        out += "; @launch kernel=t_kernel grid=(256,1,1) block=(256,1,1) lds=0\n"
    for _ in range(1 + opt.get("k1x", 0)):
        out += f"; @launch kernel=k1_kernel grid=(256,1,1) block=(768,1,1) lds={l1}\n"
    out += f"; @launch kernel=k2_kernel grid=(224,1,1) block=(256,1,1) lds={l2}\n"
    out += '.amdgcn_target "amdgcn-amd-amdhsa--gfx950"\n.text\n'
    out += k1 + k2
    if opt.get("touch"):
        out += gen_touch(opt)
    out += '.section .rodata,"a"\n.p2align 6\n'
    out += kd("k1_kernel", 168, 168)
    out += ".p2align 6\n"
    out += kd("k2_kernel", 512, 256)
    if opt.get("touch"):
        out += ".p2align 6\n" + kd("t_kernel", 64, 64)
    return out


if __name__ == "__main__":
    opt = {}
    outp = f"cdna_kernels/{NAME}.s"
    for arg in sys.argv[1:]:
        if arg.startswith("-o"):
            outp = arg[2:]
        else:
            k, val = arg.split("=")
            opt[k] = int(val)
    open(outp, "w").write(build(opt))
    print("wrote", outp)
```
